```python
import torch

def _softmax(x, axis=-1):
    return torch.softmax(x, dim=axis)
def _gelu(x):
    return torch.nn.functional.gelu(x, approximate="tanh")
def _silu(x):
    return torch.nn.functional.silu(x)
def _sigmoid(x):
    return torch.sigmoid(x)
def _layernorm(x, axis=-1, eps=1e-5):
    m = x.mean(dim=axis, keepdim=True)
    v = x.var(dim=axis, keepdim=True, unbiased=False)
    return (x - m) / torch.sqrt(v + eps)
def _scatter_add(tgt, idx, src, axis=0):
    return tgt.clone().index_add_(axis, idx, src)
def _segment_sum(src, seg, n):
    out = torch.zeros((n,) + src.shape[1:], dtype=src.dtype)
    return out.index_add_(0, seg, src)
def _pad(x, pw):
    flat = tuple(v for pair in reversed(pw) for v in pair)
    return torch.nn.functional.pad(x, flat)

kernel_name = 'standalone__sliding_local_fixed_window__prompt'

def setup_inputs():

    _w = (lambda a: (lambda t: t.to(torch.bfloat16) if t.is_floating_point() else t)(torch.as_tensor(a)))
    B, H, S, D = 1, 32, 2048, 192
    return {
        "q": _w((lambda *s: torch.randn(*s, dtype=torch.bfloat16) * 0.8)(B, H, S, D)),
        "k": _w((lambda *s: torch.randn(*s, dtype=torch.bfloat16) * 0.8)(B, H, S, D)),
        "v": _w((lambda *s: torch.randn(*s, dtype=torch.bfloat16) * 0.05)(B, H, S, D)),
    }

def reference(q, k, v):
    B, H, S, D = q.shape
    w = 32
    pos = torch.arange(S)
    rel = pos[:, None] - pos[None, :]
    mask = (rel >= 0) & (rel < w)
    scores = torch.einsum("bhqd,bhkd->bhqk", q, k) * (D ** -0.5)
    scores = torch.where(mask[None, None], scores, (lambda x, dt: x.to(dt))(torch.as_tensor(-1e9), q.dtype))
    p = _softmax(scores, axis=-1)
    return torch.einsum("bhqk,bhkd->bhqd", p, v)
```

```python
import sys, struct, math

KNAME = "standalone__sliding_local_fixed_window__prompt_kernel"
NB = 25165824
TILE = 6144

def f2u(x):
    return struct.unpack("<I", struct.pack("<f", x))[0]

class Gen:
    def __init__(self, ldnt="nt", stnt="", stamp=False, direct_store=False, shared_pol=None, alt=True, xcd=True):
        self.L = []
        self.vm = []
        self.ldnt = ldnt
        self.stnt = stnt
        self.stamp = stamp
        self.direct_store = direct_store
        self.shared_pol = ldnt if shared_pol is None else shared_pol
        self.alt = alt
        self.xcd = xcd
    def e(self, s):
        self.L.append("  " + s)
    def lab(self, s):
        self.L.append(s + ":")
    def c(self, s):
        self.L.append("  ; " + s)
    def wait_vm(self, tag):
        last = max(i for i, o in enumerate(self.vm) if o == tag)
        cnt = len(self.vm) - 1 - last
        assert cnt <= 63
        self.e(f"s_waitcnt vmcnt({cnt})")

SRD = {"Q": 12, "K": 16, "V": 20, "O": 24}
sLDS = 28
sHS = 29
sC = 30
sW = 31
sMASK = 32
sKV = 40
sQ = 46
sT0, sT1, sT2, sT3 = 50, 51, 52, 53
sDIR = 54
sSTAMP = 56

vG = 1
vA0, vA1, vT0, vT1, vL = 7, 8, 9, 10, 11
vM01, vM23 = 12, 13
vD0, vD1 = 14, 15
vS = 16
vX = 28
vTa, vTb = 36, 37
vP = 40
vO = 48
vK = 96
vR = 120
NV = 144
aV = 0
aK = 144
aQ = 216
NA = 240

def gen(**kw):
    g = Gen(**kw)
    e = g.e
    LDS_W = 6*TILE
    hdr = open("standalone__sliding_local_fixed_window__prompt.s.ref").read().split("\n")
    top = []
    for l in hdr:
        if l.startswith("; @launch"):
            break
        top.append(l)
    top.append(f"; @launch grid=(256,1,1) block=(256,1,1) lds={4*LDS_W}")
    top.append('.amdgcn_target "amdgcn-amd-amdhsa--gfx950"')
    top.append(".text")
    top.append(f".globl {KNAME}")
    top.append(".p2align 8")
    top.append(f".type {KNAME},@function")
    top.append(f"{KNAME}:")

    if g.stamp:
        e(f"s_memrealtime s[{sSTAMP}:{sSTAMP+1}]")
        e(f"s_load_dwordx2 s[60:61], s[0:1], 40")
    e("s_load_dwordx2 s[16:17], s[0:1], 8")
    e("s_load_dwordx2 s[12:13], s[0:1], 0")
    e("s_load_dwordx2 s[20:21], s[0:1], 16")
    e("s_load_dwordx2 s[24:25], s[0:1], 24")
    e("s_cmp_ge_u32 s2, 256")
    e("s_cbranch_scc1 L_end")
    e("v_lshrrev_b32 v16, 6, v0")
    e("v_and_b32 v0, 63, v0")
    e(f"v_readfirstlane_b32 s{sW}, v16")
    e("v_lshrrev_b32 v17, 3, v0")
    e(f"v_lshlrev_b32 v{vL}, 4, v0")
    for j in range(3):
        e(f"v_add_u32 v18, {8*j}, v17")
        e(f"v_mul_u32_u24 v18, 11, v18")
        e(f"v_lshrrev_b32 v18, 5, v18")
        e(f"v_lshlrev_b32 v18, 4, v18")
        e(f"v_xor_b32 v{vG+j}, v18, v{vL}")
        e(f"v_add_u32 v{vG+3+j}, 3072, v{vG+j}")
    for n in "QKVO":
        e(f"s_mov_b32 s{SRD[n]+2}, {NB}")
        e(f"s_mov_b32 s{SRD[n]+3}, 0x20000")
    if g.xcd:
        e(f"s_and_b32 s{sT0}, s2, 7")
        e(f"s_lshl_b32 s{sT0}, s{sT0}, 5")
        e(f"s_lshr_b32 s{sT1}, s2, 3")
        e(f"s_add_u32 s{sT0}, s{sT0}, s{sT1}")
    else:
        e(f"s_mov_b32 s{sT0}, s2")
    e(f"s_lshl_b32 s{sT1}, s{sT0}, 2")
    e(f"s_add_u32 s{sT1}, s{sT1}, s{sW}")
    e(f"s_and_b32 s{sHS}, s{sT1}, 31")
    e(f"s_mul_i32 s{sT1}, s{sT1}, {4*TILE}")
    e(f"s_lshr_b32 s{sT0}, s{sT0}, 3")
    e(f"s_mul_i32 s{sT0}, s{sT0}, 786432")
    e(f"s_mul_i32 s{sLDS}, s{sW}, {LDS_W}")
    if g.alt:
        e(f"s_bitcmp0_b32 s{sW}, 0")
    else:
        e(f"s_cmp_eq_u32 s{sW}, s{sW}")
    e(f"s_cselect_b64 s[{sDIR}:{sDIR+1}], -1, 0")
    e(f"s_cselect_b32 s{sT2}, -1, 1")
    e(f"s_cselect_b32 s{sT3}, 3, 0")
    e(f"s_cselect_b32 s{sKV}, 3, -2")
    e(f"s_mul_i32 s{sT2}, s{sT2}, {TILE}")
    e(f"s_mul_i32 s{sT3}, s{sT3}, {TILE}")
    e(f"s_mul_i32 s{sKV}, s{sKV}, {TILE}")
    e(f"s_add_u32 s{sQ}, s{sT1}, s{sT3}")
    e(f"s_add_u32 s{sKV}, s{sT1}, s{sKV}")
    for j in range(1, 6):
        e(f"s_add_u32 s{sKV+j}, s{sKV+j-1}, s{sT2}")
    for t in range(1, 4):
        e(f"s_add_u32 s{sQ+t}, s{sQ+t-1}, s{sT2}")
    for j in range(6):
        e(f"s_max_i32 s{sKV+j}, s{sKV+j}, s{sT0}")

    def dma(name, idx, slot):
        so = (sQ if name == "Q" else sKV) + idx
        srd = SRD[name]
        pol = g.ldnt
        if name != "Q" and idx in (0, 1, 4, 5):
            pol = g.shared_pol
        for hf in range(2):
            e(f"s_add_u32 m0, s{sLDS}, {slot*TILE + hf*3072}")
            e("s_nop 0")
            for j in range(3):
                off = f" offset:{j*1024}" if j else ""
                e(f"buffer_load_dwordx4 v{vG+hf*3+j}, s[{srd}:{srd+3}], s{so} offen{off} {pol} lds")
                g.vm.append((name, idx))

    e("s_waitcnt lgkmcnt(0)")
    order = [("K",0),("K",1),("K",2),("Q",0),("V",0),("V",1),("V",2),("Q",1),("K",3),("V",3),("Q",2),("K",4),("V",4),("Q",3),("K",5),("V",5)]
    slot_of = {}
    for i in range(6):
        dma(order[i][0], order[i][1], i)
        slot_of[order[i]] = i
    nxt = [6]
    def refill(slot):
        if nxt[0] < len(order):
            o = order[nxt[0]]
            dma(o[0], o[1], slot)
            slot_of[o] = slot
            nxt[0] += 1

    e("v_and_b32 v16, 15, v0")
    e("v_lshrrev_b32 v17, 4, v0")
    e("v_and_b32 v18, 7, v0")
    e("v_xor_b32 v18, v18, v17")
    e("v_lshlrev_b32 v18, 4, v18")
    e("v_mul_u32_u24 v19, 384, v16")
    e("v_add3_u32 v%d, v18, v19, s%d" % (vA0, sLDS))
    e(f"v_xor_b32 v{vA1}, 64, v{vA0}")
    if g.direct_store:
        e("v_lshlrev_b32 v18, 4, v17")
        e(f"v_add_u32 v{vD0}, v18, v19")
    e("v_lshrrev_b32 v18, 2, v0")
    e("v_and_b32 v19, 3, v0")
    e("v_and_b32 v20, 7, v18")
    e("v_xor_b32 v19, v19, v20")
    e("v_lshlrev_b32 v19, 4, v19")
    e("v_mul_u32_u24 v18, 384, v18")
    e("v_add3_u32 v%d, v18, v19, s%d" % (vT0, sLDS))
    e(f"v_xor_b32 v{vT1}, 64, v{vT0}")
    e(f"v_add_u32 v{vL}, s{sLDS}, v{vL}")
    e("v_lshlrev_b32 v17, 2, v17")
    for r in range(4):
        e(f"v_add_u32 v18, {r}, v17")
        e(f"v_cmp_le_u32 s[{sMASK+2*r}:{sMASK+2*r+1}], v18, v16")
    e("s_nop 1")
    for r in range(4):
        e(f"s_xor_b64 s[{sMASK+2*r}:{sMASK+2*r+1}], s[{sMASK+2*r}:{sMASK+2*r+1}], s[{sDIR}:{sDIR+1}]")
    e("v_mov_b32 v18, 0xffff")
    e("v_mov_b32 v19, 0xffff0000")
    e(f"v_cndmask_b32 v20, 0, v18, s[{sMASK}:{sMASK+1}]")
    e(f"v_cndmask_b32 v21, 0, v19, s[{sMASK+2}:{sMASK+3}]")
    e(f"v_or_b32 v{vM01}, v20, v21")
    e(f"v_cndmask_b32 v20, 0, v18, s[{sMASK+4}:{sMASK+5}]")
    e(f"v_cndmask_b32 v21, 0, v19, s[{sMASK+6}:{sMASK+7}]")
    e(f"v_or_b32 v{vM23}, v20, v21")
    e(f"s_mov_b32 s{sC}, 0x{f2u(math.log2(math.e)/math.sqrt(192.0)):08x}")

    def read_qk(name, idx):
        slot = slot_of[(name, idx)]
        base = aQ if name == "Q" else aK + 24*(idx % 3)
        g.wait_vm((name, idx))
        for s in range(6):
            va = vA1 if (s & 1) else vA0
            e(f"ds_read_b128 a[{base+4*s}:{base+4*s+3}], v{va} offset:{slot*TILE + (s>>1)*128}")
        e("s_waitcnt lgkmcnt(0)")
        refill(slot)
    def read_v(idx, do_refill=True):
        slot = slot_of[("V", idx)]
        g.wait_vm(("V", idx))
        for b in range(12):
            u, ee = b >> 1, b & 1
            va = vT1 if (u & 1) else vT0
            r = aV + 12*b + 2*idx
            e(f"ds_read_b64_tr_b16 a[{r}:{r+1}], v{va} offset:{slot*TILE + (u>>1)*128 + 8*ee}")
        e("s_waitcnt lgkmcnt(0)")
        if do_refill:
            refill(slot)
        return slot
    def qk(which, kidx):
        d = vS + 4*which
        kb = aK + 24*(kidx % 3)
        for s in range(6):
            cc = "0" if s == 0 else f"v[{d}:{d+3}]"
            e(f"v_mfma_f32_16x16x32_bf16 v[{d}:{d+3}], a[{kb+4*s}:{kb+4*s+3}], a[{aQ+4*s}:{aQ+4*s+3}], {cc}")
    def softmax(t):
        e("s_nop 7")
        if t >= 2:
            e(f"s_cmp_lg_u32 s{sHS}, 0")
            e(f"s_cbranch_scc1 L_nohs{t}")
            for r in range(4):
                e(f"v_mov_b32 v{vS+8+r}, 0xff800000")
            if t == 3:
                for r in range(4):
                    e(f"v_mov_b32 v{vS+4+r}, 0xff800000")
            g.lab(f"L_nohs{t}")
        for r in range(4):
            e(f"v_cndmask_b32 v{vS+r}, v{vS+r}, v{vS+8+r}, s[{sMASK+2*r}:{sMASK+2*r+1}]")
        x = [vS+k for k in range(8)]
        e(f"v_max3_f32 v{vTa}, v{x[4]}, v{x[5]}, v{x[6]}")
        e(f"v_max3_f32 v{vTb}, v{x[0]}, v{x[1]}, v{x[7]}")
        e(f"v_max3_f32 v{vTa}, v{vTa}, v{x[2]}, v{x[3]}")
        e(f"v_max_f32 v{vTa}, v{vTa}, v{vTb}")
        e(f"v_mov_b32 v{vTb}, v{vTa}")
        e("s_nop 1")
        e(f"v_permlane16_swap_b32 v{vTa}, v{vTb}")
        e(f"v_max_f32 v{vTa}, v{vTa}, v{vTb}")
        e(f"v_mov_b32 v{vTb}, v{vTa}")
        e("s_nop 1")
        e(f"v_permlane32_swap_b32 v{vTa}, v{vTb}")
        e(f"v_max_f32 v{vTa}, v{vTa}, v{vTb}")
        e(f"v_mul_f32 v{vTa}, s{sC}, v{vTa}")
        for k in range(8):
            e(f"v_fma_f32 v{vX+k}, v{x[k]}, s{sC}, -v{vTa}")
        for k in range(8):
            e(f"v_exp_f32 v{vX+k}, v{vX+k}")
        e(f"v_add_f32 v{vTa}, v{vX}, v{vX+1}")
        e(f"v_add_f32 v{vTb}, v{vX+2}, v{vX+3}")
        e(f"v_add_f32 v{vTa}, v{vTa}, v{vX+4}")
        e(f"v_add_f32 v{vTb}, v{vTb}, v{vX+5}")
        e(f"v_add_f32 v{vTa}, v{vTa}, v{vX+6}")
        e(f"v_add_f32 v{vTb}, v{vTb}, v{vX+7}")
        e(f"v_add_f32 v{vTa}, v{vTa}, v{vTb}")
        e(f"v_mov_b32 v{vTb}, v{vTa}")
        e("s_nop 1")
        e(f"v_permlane16_swap_b32 v{vTa}, v{vTb}")
        e(f"v_add_f32 v{vTa}, v{vTa}, v{vTb}")
        e(f"v_mov_b32 v{vTb}, v{vTa}")
        e("s_nop 1")
        e(f"v_permlane32_swap_b32 v{vTa}, v{vTb}")
        e(f"v_add_f32 v{vTa}, v{vTa}, v{vTb}")
        e(f"v_rcp_f32 v{vTa}, v{vTa}")
        e("s_nop 0")
        for k in range(8):
            e(f"v_mul_f32 v{vX+k}, v{vX+k}, v{vTa}")
        e(f"v_cvt_pk_bf16_f32 v{vP}, v{vX}, v{vX+1}")
        e(f"v_cvt_pk_bf16_f32 v{vP+1}, v{vX+2}, v{vX+3}")
        e(f"v_cvt_pk_bf16_f32 v{vP+2}, v{vX+4}, v{vX+5}")
        e(f"v_cvt_pk_bf16_f32 v{vP+3}, v{vX+6}, v{vX+7}")
        e(f"v_and_b32 v{vP+4}, v{vP}, v{vM01}")
        e(f"v_and_b32 v{vP+5}, v{vP+1}, v{vM23}")
        e(f"v_xor_b32 v{vP}, v{vP}, v{vP+4}")
        e(f"v_xor_b32 v{vP+1}, v{vP+1}, v{vP+5}")
        e("s_nop 1")
    def pv_om(t):
        for b in range(12):
            r = aV + 12*b + 2*t
            e(f"v_mfma_f32_16x16x32_bf16 v[{vO+4*b}:{vO+4*b+3}], a[{r}:{r+3}], v[{vP}:{vP+3}], 0")
    def pv_new(t):
        for b in range(12):
            r = aV + 12*b + 2*(t+2)
            e(f"v_mfma_f32_16x16x16_bf16 v[{vO+4*b}:{vO+4*b+3}], a[{r}:{r+1}], v[{vP+4}:{vP+5}], v[{vO+4*b}:{vO+4*b+3}]")
    def epilogue(t, slot):
        for b in range(12):
            e(f"v_cvt_pk_bf16_f32 v{vK+2*b}, v{vO+4*b}, v{vO+4*b+1}")
            e(f"v_cvt_pk_bf16_f32 v{vK+2*b+1}, v{vO+4*b+2}, v{vO+4*b+3}")
            if g.direct_store:
                if b & 1:
                    u = b >> 1
                    off = f" offset:{u*64}" if u else ""
                    e(f"buffer_store_dwordx4 v[{vK+4*u}:{vK+4*u+3}], v{vD0}, s[24:27], s{sQ+t} offen{off} {g.stnt}")
                    g.vm.append(("O", t))
            elif b & 1:
                u = b >> 1
                va = vA1 if (u & 1) else vA0
                e(f"ds_write_b128 v{va}, v[{vK+4*u}:{vK+4*u+3}] offset:{slot*TILE + (u>>1)*128}")
        if not g.direct_store:
            for j in range(6):
                e(f"ds_read_b128 v[{vR+4*j}:{vR+4*j+3}], v{vL} offset:{slot*TILE + j*1024}")
            for j in range(6):
                e(f"s_waitcnt lgkmcnt({5-j})")
                off = f" offset:{(j%3)*1024}" if j % 3 else ""
                e(f"buffer_store_dwordx4 v[{vR+4*j}:{vR+4*j+3}], v{vG+j}, s[24:27], s{sQ+t} offen{off} {g.stnt}")
                g.vm.append(("O", t))
            refill(slot)

    g.c("step 0")
    read_qk("K", 0); read_qk("K", 1); read_qk("K", 2); read_qk("Q", 0)
    qk(0, 0); qk(1, 1); qk(2, 2)
    softmax(0)
    read_v(0); read_v(1)
    pv_om(0)
    sl = read_v(2, do_refill=g.direct_store)
    pv_new(0)
    epilogue(0, sl)
    for t in range(1, 4):
        g.c(f"step {t}")
        read_qk("Q", t)
        qk(0, t); qk(1, t+1)
        read_qk("K", t+2)
        qk(2, t+2)
        softmax(t)
        pv_om(t)
        sl = read_v(t+2, do_refill=g.direct_store)
        pv_new(t)
        epilogue(t, sl)
    if g.stamp:
        e("s_waitcnt vmcnt(0)")
        e(f"s_memrealtime s[{sSTAMP+2}:{sSTAMP+3}]")
        e("s_waitcnt lgkmcnt(0)")
        e(f"v_mov_b32 v16, s{sSTAMP}")
        e(f"v_mov_b32 v17, s{sSTAMP+2}")
        e(f"s_lshl_b32 s{sT0}, s2, 2")
        e(f"s_add_u32 s{sT0}, s{sT0}, s{sW}")
        e(f"s_lshl_b32 s{sT0}, s{sT0}, 3")
        e(f"v_mov_b32 v18, s{sT0}")
        e("v_cmp_eq_u32 vcc, 0, v0")
        e("s_and_saveexec_b64 s[62:63], vcc")
        e("global_store_dwordx2 v18, v[16:17], s[60:61]")
    g.lab("L_end")
    e("s_endpgm")
    acc = (NV + 3)//4*4
    ftr = f""".section .rodata,"a"
.p2align 6
.amdhsa_kernel {KNAME}
  .amdhsa_next_free_vgpr {acc + NA}
  .amdhsa_next_free_sgpr 64
  .amdhsa_accum_offset {acc}
  .amdhsa_group_segment_fixed_size 0
  .amdhsa_kernarg_size 48
  .amdhsa_user_sgpr_count 2
  .amdhsa_user_sgpr_kernarg_segment_ptr 1
  .amdhsa_system_sgpr_workgroup_id_x 1
  .amdhsa_float_denorm_mode_32 3
.end_amdhsa_kernel
"""
    return "\n".join(top + g.L) + "\n" + ftr

if __name__ == "__main__":
    import argparse
    ap = argparse.ArgumentParser()
    ap.add_argument("out")
    ap.add_argument("--ld", default="nt")
    ap.add_argument("--st", default="")
    ap.add_argument("--sh", default=None)
    ap.add_argument("--stamp", action="store_true")
    ap.add_argument("--direct", action="store_true")
    ap.add_argument("--noalt", action="store_true")
    ap.add_argument("--noxcd", action="store_true")
    a = ap.parse_args()
    open(a.out, "w").write(gen(ldnt=a.ld, stnt=a.st, stamp=a.stamp, direct_store=a.direct, shared_pol=a.sh, alt=not a.noalt, xcd=not a.noxcd))
```

```python
import sys, struct, math

KNAME = "standalone__sliding_local_fixed_window__prompt_kernel"
NB = 25165824
TILE = 6144

def f2u(x):
    return struct.unpack("<I", struct.pack("<f", x))[0]

class Gen:
    def __init__(self, ldnt="nt", stnt="", stamp=False, direct_store=False, shared_pol=None, alt=True, xcd=True):
        self.L = []
        self.vm = []
        self.ldnt = ldnt
        self.stnt = stnt
        self.stamp = stamp
        self.direct_store = direct_store
        self.shared_pol = ldnt if shared_pol is None else shared_pol
        self.alt = alt
        self.xcd = xcd
    def e(self, s):
        self.L.append("  " + s)
    def lab(self, s):
        self.L.append(s + ":")
    def c(self, s):
        self.L.append("  ; " + s)
    def wait_vm(self, tag):
        last = max(i for i, o in enumerate(self.vm) if o == tag)
        cnt = len(self.vm) - 1 - last
        assert cnt <= 63
        self.e(f"s_waitcnt vmcnt({cnt})")

SRD = {"Q": 12, "K": 16, "V": 20, "O": 24}
sLDS = 28
sHS = 29
sC = 30
sW = 31
sMASK = 32
sKV = 40
sQ = 46
sT0, sT1, sT2, sT3 = 50, 51, 52, 53
sDIR = 54
sSTAMP = 56

vG = 1
vA0, vA1, vT0, vT1, vL = 7, 8, 9, 10, 11
vM01, vM23 = 12, 13
vD0, vD1 = 14, 15
vS = 16
vX = 28
vTa, vTb = 36, 37
vP = 40
vO = 48
vK = 96
vR = 120
NV = 144
aV = 0
aK = 144
aQ = 216
NA = 240

def gen(**kw):
    g = Gen(**kw)
    e = g.e
    LDS_W = 6*TILE
    hdr = open("standalone__sliding_local_fixed_window__prompt.s.ref").read().split("\n")
    top = []
    for l in hdr:
        if l.startswith("; @launch"):
            break
        top.append(l)
    top.append(f"; @launch grid=(256,1,1) block=(256,1,1) lds={4*LDS_W}")
    top.append('.amdgcn_target "amdgcn-amd-amdhsa--gfx950"')
    top.append(".text")
    top.append(f".globl {KNAME}")
    top.append(".p2align 8")
    top.append(f".type {KNAME},@function")
    top.append(f"{KNAME}:")

    if g.stamp:
        e(f"s_memrealtime s[{sSTAMP}:{sSTAMP+1}]")
        e(f"s_memtime s[64:65]")
        e(f"s_load_dwordx2 s[60:61], s[0:1], 40")
        e(f"s_load_dwordx2 s[68:69], s[0:1], 32")
    e("s_load_dwordx2 s[16:17], s[0:1], 8")
    e("s_load_dwordx2 s[12:13], s[0:1], 0")
    e("s_load_dwordx2 s[20:21], s[0:1], 16")
    e("s_load_dwordx2 s[24:25], s[0:1], 24")
    e("s_cmp_ge_u32 s2, 256")
    e("s_cbranch_scc1 L_end")
    e("v_lshrrev_b32 v16, 6, v0")
    e("v_and_b32 v0, 63, v0")
    e(f"v_readfirstlane_b32 s{sW}, v16")
    e("v_lshrrev_b32 v17, 3, v0")
    e(f"v_lshlrev_b32 v{vL}, 4, v0")
    for j in range(3):
        e(f"v_add_u32 v18, {8*j}, v17")
        e(f"v_mul_u32_u24 v18, 11, v18")
        e(f"v_lshrrev_b32 v18, 5, v18")
        e(f"v_lshlrev_b32 v18, 4, v18")
        e(f"v_xor_b32 v{vG+j}, v18, v{vL}")
        e(f"v_add_u32 v{vG+3+j}, 3072, v{vG+j}")
    for n in "QKVO":
        e(f"s_mov_b32 s{SRD[n]+2}, {NB}")
        e(f"s_mov_b32 s{SRD[n]+3}, 0x20000")
    if g.xcd:
        e(f"s_and_b32 s{sT0}, s2, 7")
        e(f"s_lshl_b32 s{sT0}, s{sT0}, 5")
        e(f"s_lshr_b32 s{sT1}, s2, 3")
        e(f"s_add_u32 s{sT0}, s{sT0}, s{sT1}")
    else:
        e(f"s_mov_b32 s{sT0}, s2")
    e(f"s_lshl_b32 s{sT1}, s{sT0}, 2")
    e(f"s_add_u32 s{sT1}, s{sT1}, s{sW}")
    e(f"s_and_b32 s{sHS}, s{sT1}, 31")
    e(f"s_mul_i32 s{sT1}, s{sT1}, {4*TILE}")
    e(f"s_lshr_b32 s{sT0}, s{sT0}, 3")
    e(f"s_mul_i32 s{sT0}, s{sT0}, 786432")
    e(f"s_mul_i32 s{sLDS}, s{sW}, {LDS_W}")
    if g.alt:
        e(f"s_bitcmp0_b32 s{sW}, 0")
    else:
        e(f"s_cmp_eq_u32 s{sW}, s{sW}")
    e(f"s_cselect_b64 s[{sDIR}:{sDIR+1}], -1, 0")
    e(f"s_cselect_b32 s{sT2}, -1, 1")
    e(f"s_cselect_b32 s{sT3}, 3, 0")
    e(f"s_cselect_b32 s{sKV}, 3, -2")
    e(f"s_mul_i32 s{sT2}, s{sT2}, {TILE}")
    e(f"s_mul_i32 s{sT3}, s{sT3}, {TILE}")
    e(f"s_mul_i32 s{sKV}, s{sKV}, {TILE}")
    e(f"s_add_u32 s{sQ}, s{sT1}, s{sT3}")
    e(f"s_add_u32 s{sKV}, s{sT1}, s{sKV}")
    for j in range(1, 6):
        e(f"s_add_u32 s{sKV+j}, s{sKV+j-1}, s{sT2}")
    for t in range(1, 4):
        e(f"s_add_u32 s{sQ+t}, s{sQ+t-1}, s{sT2}")
    for j in range(6):
        e(f"s_max_i32 s{sKV+j}, s{sKV+j}, s{sT0}")

    def dma(name, idx, slot):
        so = (sQ if name == "Q" else sKV) + idx
        srd = SRD[name]
        pol = g.ldnt
        if name != "Q" and idx in (0, 1, 4, 5):
            pol = g.shared_pol
        for hf in range(2):
            e(f"s_add_u32 m0, s{sLDS}, {slot*TILE + hf*3072}")
            e("s_nop 0")
            for j in range(3):
                off = f" offset:{j*1024}" if j else ""
                e(f"buffer_load_dwordx4 v{vG+hf*3+j}, s[{srd}:{srd+3}], s{so} offen{off} {pol} lds")
                g.vm.append((name, idx))

    e("s_waitcnt lgkmcnt(0)")
    order = [("K",0),("K",1),("K",2),("Q",0),("V",0),("V",1),("V",2),("Q",1),("K",3),("V",3),("Q",2),("K",4),("V",4),("Q",3),("K",5),("V",5)]
    slot_of = {}
    for i in range(6):
        dma(order[i][0], order[i][1], i)
        slot_of[order[i]] = i
    nxt = [6]
    def refill(slot):
        if nxt[0] < len(order):
            o = order[nxt[0]]
            dma(o[0], o[1], slot)
            slot_of[o] = slot
            nxt[0] += 1

    e("v_and_b32 v16, 15, v0")
    e("v_lshrrev_b32 v17, 4, v0")
    e("v_and_b32 v18, 7, v0")
    e("v_xor_b32 v18, v18, v17")
    e("v_lshlrev_b32 v18, 4, v18")
    e("v_mul_u32_u24 v19, 384, v16")
    e("v_add3_u32 v%d, v18, v19, s%d" % (vA0, sLDS))
    e(f"v_xor_b32 v{vA1}, 64, v{vA0}")
    if g.direct_store:
        e("v_lshlrev_b32 v18, 4, v17")
        e(f"v_add_u32 v{vD0}, v18, v19")
    e("v_lshrrev_b32 v18, 2, v0")
    e("v_and_b32 v19, 3, v0")
    e("v_and_b32 v20, 7, v18")
    e("v_xor_b32 v19, v19, v20")
    e("v_lshlrev_b32 v19, 4, v19")
    e("v_mul_u32_u24 v18, 384, v18")
    e("v_add3_u32 v%d, v18, v19, s%d" % (vT0, sLDS))
    e(f"v_xor_b32 v{vT1}, 64, v{vT0}")
    e(f"v_add_u32 v{vL}, s{sLDS}, v{vL}")
    e("v_lshlrev_b32 v17, 2, v17")
    for r in range(4):
        e(f"v_add_u32 v18, {r}, v17")
        e(f"v_cmp_le_u32 s[{sMASK+2*r}:{sMASK+2*r+1}], v18, v16")
    e("s_nop 1")
    for r in range(4):
        e(f"s_xor_b64 s[{sMASK+2*r}:{sMASK+2*r+1}], s[{sMASK+2*r}:{sMASK+2*r+1}], s[{sDIR}:{sDIR+1}]")
    e("v_mov_b32 v18, 0xffff")
    e("v_mov_b32 v19, 0xffff0000")
    e(f"v_cndmask_b32 v20, 0, v18, s[{sMASK}:{sMASK+1}]")
    e(f"v_cndmask_b32 v21, 0, v19, s[{sMASK+2}:{sMASK+3}]")
    e(f"v_or_b32 v{vM01}, v20, v21")
    e(f"v_cndmask_b32 v20, 0, v18, s[{sMASK+4}:{sMASK+5}]")
    e(f"v_cndmask_b32 v21, 0, v19, s[{sMASK+6}:{sMASK+7}]")
    e(f"v_or_b32 v{vM23}, v20, v21")
    e(f"s_mov_b32 s{sC}, 0x{f2u(math.log2(math.e)/math.sqrt(192.0)):08x}")

    def read_qk(name, idx):
        slot = slot_of[(name, idx)]
        base = aQ if name == "Q" else aK + 24*(idx % 3)
        g.wait_vm((name, idx))
        for s in range(6):
            va = vA1 if (s & 1) else vA0
            e(f"ds_read_b128 a[{base+4*s}:{base+4*s+3}], v{va} offset:{slot*TILE + (s>>1)*128}")
        e("s_waitcnt lgkmcnt(0)")
        refill(slot)
    def read_v(idx, do_refill=True):
        slot = slot_of[("V", idx)]
        g.wait_vm(("V", idx))
        for b in range(12):
            u, ee = b >> 1, b & 1
            va = vT1 if (u & 1) else vT0
            r = aV + 12*b + 2*idx
            e(f"ds_read_b64_tr_b16 a[{r}:{r+1}], v{va} offset:{slot*TILE + (u>>1)*128 + 8*ee}")
        e("s_waitcnt lgkmcnt(0)")
        if do_refill:
            refill(slot)
        return slot
    def qk(which, kidx):
        d = vS + 4*which
        kb = aK + 24*(kidx % 3)
        for s in range(6):
            cc = "0" if s == 0 else f"v[{d}:{d+3}]"
            e(f"v_mfma_f32_16x16x32_bf16 v[{d}:{d+3}], a[{kb+4*s}:{kb+4*s+3}], a[{aQ+4*s}:{aQ+4*s+3}], {cc}")
    def softmax(t):
        e("s_nop 7")
        if t >= 2:
            e(f"s_cmp_lg_u32 s{sHS}, 0")
            e(f"s_cbranch_scc1 L_nohs{t}")
            for r in range(4):
                e(f"v_mov_b32 v{vS+8+r}, 0xff800000")
            if t == 3:
                for r in range(4):
                    e(f"v_mov_b32 v{vS+4+r}, 0xff800000")
            g.lab(f"L_nohs{t}")
        for r in range(4):
            e(f"v_cndmask_b32 v{vS+r}, v{vS+r}, v{vS+8+r}, s[{sMASK+2*r}:{sMASK+2*r+1}]")
        x = [vS+k for k in range(8)]
        e(f"v_max3_f32 v{vTa}, v{x[4]}, v{x[5]}, v{x[6]}")
        e(f"v_max3_f32 v{vTb}, v{x[0]}, v{x[1]}, v{x[7]}")
        e(f"v_max3_f32 v{vTa}, v{vTa}, v{x[2]}, v{x[3]}")
        e(f"v_max_f32 v{vTa}, v{vTa}, v{vTb}")
        e(f"v_mov_b32 v{vTb}, v{vTa}")
        e("s_nop 1")
        e(f"v_permlane16_swap_b32 v{vTa}, v{vTb}")
        e(f"v_max_f32 v{vTa}, v{vTa}, v{vTb}")
        e(f"v_mov_b32 v{vTb}, v{vTa}")
        e("s_nop 1")
        e(f"v_permlane32_swap_b32 v{vTa}, v{vTb}")
        e(f"v_max_f32 v{vTa}, v{vTa}, v{vTb}")
        e(f"v_mul_f32 v{vTa}, s{sC}, v{vTa}")
        for k in range(8):
            e(f"v_fma_f32 v{vX+k}, v{x[k]}, s{sC}, -v{vTa}")
        for k in range(8):
            e(f"v_exp_f32 v{vX+k}, v{vX+k}")
        e(f"v_add_f32 v{vTa}, v{vX}, v{vX+1}")
        e(f"v_add_f32 v{vTb}, v{vX+2}, v{vX+3}")
        e(f"v_add_f32 v{vTa}, v{vTa}, v{vX+4}")
        e(f"v_add_f32 v{vTb}, v{vTb}, v{vX+5}")
        e(f"v_add_f32 v{vTa}, v{vTa}, v{vX+6}")
        e(f"v_add_f32 v{vTb}, v{vTb}, v{vX+7}")
        e(f"v_add_f32 v{vTa}, v{vTa}, v{vTb}")
        e(f"v_mov_b32 v{vTb}, v{vTa}")
        e("s_nop 1")
        e(f"v_permlane16_swap_b32 v{vTa}, v{vTb}")
        e(f"v_add_f32 v{vTa}, v{vTa}, v{vTb}")
        e(f"v_mov_b32 v{vTb}, v{vTa}")
        e("s_nop 1")
        e(f"v_permlane32_swap_b32 v{vTa}, v{vTb}")
        e(f"v_add_f32 v{vTa}, v{vTa}, v{vTb}")
        e(f"v_rcp_f32 v{vTa}, v{vTa}")
        e("s_nop 0")
        for k in range(8):
            e(f"v_mul_f32 v{vX+k}, v{vX+k}, v{vTa}")
        e(f"v_cvt_pk_bf16_f32 v{vP}, v{vX}, v{vX+1}")
        e(f"v_cvt_pk_bf16_f32 v{vP+1}, v{vX+2}, v{vX+3}")
        e(f"v_cvt_pk_bf16_f32 v{vP+2}, v{vX+4}, v{vX+5}")
        e(f"v_cvt_pk_bf16_f32 v{vP+3}, v{vX+6}, v{vX+7}")
        e(f"v_and_b32 v{vP+4}, v{vP}, v{vM01}")
        e(f"v_and_b32 v{vP+5}, v{vP+1}, v{vM23}")
        e(f"v_xor_b32 v{vP}, v{vP}, v{vP+4}")
        e(f"v_xor_b32 v{vP+1}, v{vP+1}, v{vP+5}")
        e("s_nop 1")
    def pv_om(t):
        for b in range(12):
            r = aV + 12*b + 2*t
            e(f"v_mfma_f32_16x16x32_bf16 v[{vO+4*b}:{vO+4*b+3}], a[{r}:{r+3}], v[{vP}:{vP+3}], 0")
    def pv_new(t):
        for b in range(12):
            r = aV + 12*b + 2*(t+2)
            e(f"v_mfma_f32_16x16x16_bf16 v[{vO+4*b}:{vO+4*b+3}], a[{r}:{r+1}], v[{vP+4}:{vP+5}], v[{vO+4*b}:{vO+4*b+3}]")
    def epilogue(t, slot):
        for b in range(12):
            e(f"v_cvt_pk_bf16_f32 v{vK+2*b}, v{vO+4*b}, v{vO+4*b+1}")
            e(f"v_cvt_pk_bf16_f32 v{vK+2*b+1}, v{vO+4*b+2}, v{vO+4*b+3}")
            if g.direct_store:
                if b & 1:
                    u = b >> 1
                    off = f" offset:{u*64}" if u else ""
                    e(f"buffer_store_dwordx4 v[{vK+4*u}:{vK+4*u+3}], v{vD0}, s[24:27], s{sQ+t} offen{off} {g.stnt}")
                    g.vm.append(("O", t))
            elif b & 1:
                u = b >> 1
                va = vA1 if (u & 1) else vA0
                e(f"ds_write_b128 v{va}, v[{vK+4*u}:{vK+4*u+3}] offset:{slot*TILE + (u>>1)*128}")
        if not g.direct_store:
            for j in range(6):
                e(f"ds_read_b128 v[{vR+4*j}:{vR+4*j+3}], v{vL} offset:{slot*TILE + j*1024}")
            for j in range(6):
                e(f"s_waitcnt lgkmcnt({5-j})")
                off = f" offset:{(j%3)*1024}" if j % 3 else ""
                e(f"buffer_store_dwordx4 v[{vR+4*j}:{vR+4*j+3}], v{vG+j}, s[24:27], s{sQ+t} offen{off} {g.stnt}")
                g.vm.append(("O", t))
            refill(slot)

    g.c("step 0")
    read_qk("K", 0); read_qk("K", 1); read_qk("K", 2); read_qk("Q", 0)
    qk(0, 0); qk(1, 1); qk(2, 2)
    softmax(0)
    read_v(0); read_v(1)
    pv_om(0)
    sl = read_v(2, do_refill=g.direct_store)
    pv_new(0)
    epilogue(0, sl)
    for t in range(1, 4):
        g.c(f"step {t}")
        read_qk("Q", t)
        qk(0, t); qk(1, t+1)
        read_qk("K", t+2)
        qk(2, t+2)
        softmax(t)
        pv_om(t)
        sl = read_v(t+2, do_refill=g.direct_store)
        pv_new(t)
        epilogue(t, sl)
    if g.stamp:
        e("s_waitcnt vmcnt(0)")
        e(f"s_memrealtime s[{sSTAMP+2}:{sSTAMP+3}]")
        e("s_waitcnt lgkmcnt(0)")
        e(f"v_mov_b32 v16, s{sSTAMP}")
        e(f"v_mov_b32 v17, s{sSTAMP+2}")
        e(f"s_lshl_b32 s{sT0}, s2, 2")
        e(f"s_add_u32 s{sT0}, s{sT0}, s{sW}")
        e(f"s_lshl_b32 s{sT0}, s{sT0}, 3")
        e(f"v_mov_b32 v18, s{sT0}")
        e("v_cmp_eq_u32 vcc, 0, v0")
        e("s_and_saveexec_b64 s[62:63], vcc")
        e("global_store_dwordx2 v18, v[16:17], s[60:61]")
        e("s_memtime s[66:67]")
        e("s_waitcnt lgkmcnt(0)")
        e("v_mov_b32 v18, 0")
        e("v_not_b32 v19, v16")
        e("global_atomic_umax v18, v19, s[68:69]")
        e("global_atomic_umax v18, v17, s[68:69] offset:4")
        e("global_atomic_umax v18, v16, s[68:69] offset:8")
        e("v_not_b32 v19, v17")
        e("global_atomic_umax v18, v19, s[68:69] offset:12")
        e("s_sub_u32 s66, s66, s64")
        e("v_mov_b32 v20, s66")
        e("v_sub_u32 v21, v17, v16")
        e("global_atomic_add v18, v20, s[68:69] offset:16")
        e("global_atomic_add v18, v21, s[68:69] offset:20")
    g.lab("L_end")
    e("s_endpgm")
    acc = (NV + 3)//4*4
    ftr = f""".section .rodata,"a"
.p2align 6
.amdhsa_kernel {KNAME}
  .amdhsa_next_free_vgpr {acc + NA}
  .amdhsa_next_free_sgpr 72
  .amdhsa_accum_offset {acc}
  .amdhsa_group_segment_fixed_size 0
  .amdhsa_kernarg_size 48
  .amdhsa_user_sgpr_count 2
  .amdhsa_user_sgpr_kernarg_segment_ptr 1
  .amdhsa_system_sgpr_workgroup_id_x 1
  .amdhsa_float_denorm_mode_32 3
.end_amdhsa_kernel
"""
    return "\n".join(top + g.L) + "\n" + ftr

if __name__ == "__main__":
    import argparse
    ap = argparse.ArgumentParser()
    ap.add_argument("out")
    ap.add_argument("--ld", default="nt")
    ap.add_argument("--st", default="")
    ap.add_argument("--sh", default=None)
    ap.add_argument("--stamp", action="store_true")
    ap.add_argument("--direct", action="store_true")
    ap.add_argument("--noalt", action="store_true")
    ap.add_argument("--noxcd", action="store_true")
    a = ap.parse_args()
    open(a.out, "w").write(gen(ldnt=a.ld, stnt=a.st, stamp=a.stamp, direct_store=a.direct, shared_pol=a.sh, alt=not a.noalt, xcd=not a.noxcd))
```

```python
import sys, struct, math

KNAME = "standalone__sliding_local_fixed_window__prompt_kernel"
NB = 25165824
TILE = 6144

def f2u(x):
    return struct.unpack("<I", struct.pack("<f", x))[0]

class Gen:
    def __init__(self, ldnt="nt", stnt="", stamp=False, direct_store=False, shared_pol=None, alt=True, xcd=True, spin=0, atom=False):
        self.spin = spin
        self.atom = atom
        self.L = []
        self.vm = []
        self.ldnt = ldnt
        self.stnt = stnt
        self.stamp = stamp
        self.direct_store = direct_store
        self.shared_pol = ldnt if shared_pol is None else shared_pol
        self.alt = alt
        self.xcd = xcd
    def e(self, s):
        self.L.append("  " + s)
    def lab(self, s):
        self.L.append(s + ":")
    def c(self, s):
        self.L.append("  ; " + s)
    def wait_vm(self, tag):
        last = max(i for i, o in enumerate(self.vm) if o == tag)
        cnt = len(self.vm) - 1 - last
        assert cnt <= 63
        self.e(f"s_waitcnt vmcnt({cnt})")

SRD = {"Q": 12, "K": 16, "V": 20, "O": 24}
sLDS = 28
sHS = 29
sC = 30
sW = 31
sMASK = 32
sKV = 40
sQ = 46
sT0, sT1, sT2, sT3 = 50, 51, 52, 53
sDIR = 54
sSTAMP = 56

vG = 1
vA0, vA1, vT0, vT1, vL = 7, 8, 9, 10, 11
vM01, vM23 = 12, 13
vD0, vD1 = 14, 15
vS = 16
vX = 28
vTa, vTb = 36, 37
vP = 40
vO = 48
vK = 96
vR = 120
NV = 144
aV = 0
aK = 144
aQ = 216
NA = 240

def gen(**kw):
    g = Gen(**kw)
    e = g.e
    LDS_W = 6*TILE
    hdr = open("standalone__sliding_local_fixed_window__prompt.s.ref").read().split("\n")
    top = []
    for l in hdr:
        if l.startswith("; @launch"):
            break
        top.append(l)
    top.append(f"; @launch grid=(256,1,1) block=(256,1,1) lds={4*LDS_W}")
    top.append('.amdgcn_target "amdgcn-amd-amdhsa--gfx950"')
    top.append(".text")
    top.append(f".globl {KNAME}")
    top.append(".p2align 8")
    top.append(f".type {KNAME},@function")
    top.append(f"{KNAME}:")

    if g.spin:
        e(f"s_memrealtime s[70:71]")
    if g.stamp:
        e(f"s_memrealtime s[{sSTAMP}:{sSTAMP+1}]")
        e(f"s_memtime s[64:65]")
        e(f"s_load_dwordx2 s[60:61], s[0:1], 40")
        e(f"s_load_dwordx2 s[68:69], s[0:1], 32")
    e("s_load_dwordx2 s[16:17], s[0:1], 8")
    e("s_load_dwordx2 s[12:13], s[0:1], 0")
    e("s_load_dwordx2 s[20:21], s[0:1], 16")
    e("s_load_dwordx2 s[24:25], s[0:1], 24")
    e("s_cmp_ge_u32 s2, 256")
    e("s_cbranch_scc1 L_end")
    e("v_lshrrev_b32 v16, 6, v0")
    e("v_and_b32 v0, 63, v0")
    e(f"v_readfirstlane_b32 s{sW}, v16")
    e("v_lshrrev_b32 v17, 3, v0")
    e(f"v_lshlrev_b32 v{vL}, 4, v0")
    for j in range(3):
        e(f"v_add_u32 v18, {8*j}, v17")
        e(f"v_mul_u32_u24 v18, 11, v18")
        e(f"v_lshrrev_b32 v18, 5, v18")
        e(f"v_lshlrev_b32 v18, 4, v18")
        e(f"v_xor_b32 v{vG+j}, v18, v{vL}")
        e(f"v_add_u32 v{vG+3+j}, 3072, v{vG+j}")
    for n in "QKVO":
        e(f"s_mov_b32 s{SRD[n]+2}, {NB}")
        e(f"s_mov_b32 s{SRD[n]+3}, 0x20000")
    if g.xcd:
        e(f"s_and_b32 s{sT0}, s2, 7")
        e(f"s_lshl_b32 s{sT0}, s{sT0}, 5")
        e(f"s_lshr_b32 s{sT1}, s2, 3")
        e(f"s_add_u32 s{sT0}, s{sT0}, s{sT1}")
    else:
        e(f"s_mov_b32 s{sT0}, s2")
    e(f"s_lshl_b32 s{sT1}, s{sT0}, 2")
    e(f"s_add_u32 s{sT1}, s{sT1}, s{sW}")
    e(f"s_and_b32 s{sHS}, s{sT1}, 31")
    e(f"s_mul_i32 s{sT1}, s{sT1}, {4*TILE}")
    e(f"s_lshr_b32 s{sT0}, s{sT0}, 3")
    e(f"s_mul_i32 s{sT0}, s{sT0}, 786432")
    e(f"s_mul_i32 s{sLDS}, s{sW}, {LDS_W}")
    if g.alt:
        e(f"s_bitcmp0_b32 s{sW}, 0")
    else:
        e(f"s_cmp_eq_u32 s{sW}, s{sW}")
    e(f"s_cselect_b64 s[{sDIR}:{sDIR+1}], -1, 0")
    e(f"s_cselect_b32 s{sT2}, -1, 1")
    e(f"s_cselect_b32 s{sT3}, 3, 0")
    e(f"s_cselect_b32 s{sKV}, 3, -2")
    e(f"s_mul_i32 s{sT2}, s{sT2}, {TILE}")
    e(f"s_mul_i32 s{sT3}, s{sT3}, {TILE}")
    e(f"s_mul_i32 s{sKV}, s{sKV}, {TILE}")
    e(f"s_add_u32 s{sQ}, s{sT1}, s{sT3}")
    e(f"s_add_u32 s{sKV}, s{sT1}, s{sKV}")
    for j in range(1, 6):
        e(f"s_add_u32 s{sKV+j}, s{sKV+j-1}, s{sT2}")
    for t in range(1, 4):
        e(f"s_add_u32 s{sQ+t}, s{sQ+t-1}, s{sT2}")
    for j in range(6):
        e(f"s_max_i32 s{sKV+j}, s{sKV+j}, s{sT0}")

    def dma(name, idx, slot):
        so = (sQ if name == "Q" else sKV) + idx
        srd = SRD[name]
        pol = g.ldnt
        if name != "Q" and idx in (0, 1, 4, 5):
            pol = g.shared_pol
        for hf in range(2):
            e(f"s_add_u32 m0, s{sLDS}, {slot*TILE + hf*3072}")
            e("s_nop 0")
            for j in range(3):
                off = f" offset:{j*1024}" if j else ""
                e(f"buffer_load_dwordx4 v{vG+hf*3+j}, s[{srd}:{srd+3}], s{so} offen{off} {pol} lds")
                g.vm.append((name, idx))

    e("s_waitcnt lgkmcnt(0)")
    order = [("K",0),("K",1),("K",2),("Q",0),("V",0),("V",1),("V",2),("Q",1),("K",3),("V",3),("Q",2),("K",4),("V",4),("Q",3),("K",5),("V",5)]
    slot_of = {}
    for i in range(6):
        dma(order[i][0], order[i][1], i)
        slot_of[order[i]] = i
    nxt = [6]
    def refill(slot):
        if nxt[0] < len(order):
            o = order[nxt[0]]
            dma(o[0], o[1], slot)
            slot_of[o] = slot
            nxt[0] += 1

    e("v_and_b32 v16, 15, v0")
    e("v_lshrrev_b32 v17, 4, v0")
    e("v_and_b32 v18, 7, v0")
    e("v_xor_b32 v18, v18, v17")
    e("v_lshlrev_b32 v18, 4, v18")
    e("v_mul_u32_u24 v19, 384, v16")
    e("v_add3_u32 v%d, v18, v19, s%d" % (vA0, sLDS))
    e(f"v_xor_b32 v{vA1}, 64, v{vA0}")
    if g.direct_store:
        e("v_lshlrev_b32 v18, 4, v17")
        e(f"v_add_u32 v{vD0}, v18, v19")
    e("v_lshrrev_b32 v18, 2, v0")
    e("v_and_b32 v19, 3, v0")
    e("v_and_b32 v20, 7, v18")
    e("v_xor_b32 v19, v19, v20")
    e("v_lshlrev_b32 v19, 4, v19")
    e("v_mul_u32_u24 v18, 384, v18")
    e("v_add3_u32 v%d, v18, v19, s%d" % (vT0, sLDS))
    e(f"v_xor_b32 v{vT1}, 64, v{vT0}")
    e(f"v_add_u32 v{vL}, s{sLDS}, v{vL}")
    e("v_lshlrev_b32 v17, 2, v17")
    for r in range(4):
        e(f"v_add_u32 v18, {r}, v17")
        e(f"v_cmp_le_u32 s[{sMASK+2*r}:{sMASK+2*r+1}], v18, v16")
    e("s_nop 1")
    for r in range(4):
        e(f"s_xor_b64 s[{sMASK+2*r}:{sMASK+2*r+1}], s[{sMASK+2*r}:{sMASK+2*r+1}], s[{sDIR}:{sDIR+1}]")
    e("v_mov_b32 v18, 0xffff")
    e("v_mov_b32 v19, 0xffff0000")
    e(f"v_cndmask_b32 v20, 0, v18, s[{sMASK}:{sMASK+1}]")
    e(f"v_cndmask_b32 v21, 0, v19, s[{sMASK+2}:{sMASK+3}]")
    e(f"v_or_b32 v{vM01}, v20, v21")
    e(f"v_cndmask_b32 v20, 0, v18, s[{sMASK+4}:{sMASK+5}]")
    e(f"v_cndmask_b32 v21, 0, v19, s[{sMASK+6}:{sMASK+7}]")
    e(f"v_or_b32 v{vM23}, v20, v21")
    e(f"s_mov_b32 s{sC}, 0x{f2u(math.log2(math.e)/math.sqrt(192.0)):08x}")

    def read_qk(name, idx):
        slot = slot_of[(name, idx)]
        base = aQ if name == "Q" else aK + 24*(idx % 3)
        g.wait_vm((name, idx))
        for s in range(6):
            va = vA1 if (s & 1) else vA0
            e(f"ds_read_b128 a[{base+4*s}:{base+4*s+3}], v{va} offset:{slot*TILE + (s>>1)*128}")
        e("s_waitcnt lgkmcnt(0)")
        refill(slot)
    def read_v(idx, do_refill=True):
        slot = slot_of[("V", idx)]
        g.wait_vm(("V", idx))
        for b in range(12):
            u, ee = b >> 1, b & 1
            va = vT1 if (u & 1) else vT0
            r = aV + 12*b + 2*idx
            e(f"ds_read_b64_tr_b16 a[{r}:{r+1}], v{va} offset:{slot*TILE + (u>>1)*128 + 8*ee}")
        e("s_waitcnt lgkmcnt(0)")
        if do_refill:
            refill(slot)
        return slot
    def qk(which, kidx):
        d = vS + 4*which
        kb = aK + 24*(kidx % 3)
        for s in range(6):
            cc = "0" if s == 0 else f"v[{d}:{d+3}]"
            e(f"v_mfma_f32_16x16x32_bf16 v[{d}:{d+3}], a[{kb+4*s}:{kb+4*s+3}], a[{aQ+4*s}:{aQ+4*s+3}], {cc}")
    def softmax(t):
        e("s_nop 7")
        if t >= 2:
            e(f"s_cmp_lg_u32 s{sHS}, 0")
            e(f"s_cbranch_scc1 L_nohs{t}")
            for r in range(4):
                e(f"v_mov_b32 v{vS+8+r}, 0xff800000")
            if t == 3:
                for r in range(4):
                    e(f"v_mov_b32 v{vS+4+r}, 0xff800000")
            g.lab(f"L_nohs{t}")
        for r in range(4):
            e(f"v_cndmask_b32 v{vS+r}, v{vS+r}, v{vS+8+r}, s[{sMASK+2*r}:{sMASK+2*r+1}]")
        x = [vS+k for k in range(8)]
        e(f"v_max3_f32 v{vTa}, v{x[4]}, v{x[5]}, v{x[6]}")
        e(f"v_max3_f32 v{vTb}, v{x[0]}, v{x[1]}, v{x[7]}")
        e(f"v_max3_f32 v{vTa}, v{vTa}, v{x[2]}, v{x[3]}")
        e(f"v_max_f32 v{vTa}, v{vTa}, v{vTb}")
        e(f"v_mov_b32 v{vTb}, v{vTa}")
        e("s_nop 1")
        e(f"v_permlane16_swap_b32 v{vTa}, v{vTb}")
        e(f"v_max_f32 v{vTa}, v{vTa}, v{vTb}")
        e(f"v_mov_b32 v{vTb}, v{vTa}")
        e("s_nop 1")
        e(f"v_permlane32_swap_b32 v{vTa}, v{vTb}")
        e(f"v_max_f32 v{vTa}, v{vTa}, v{vTb}")
        e(f"v_mul_f32 v{vTa}, s{sC}, v{vTa}")
        for k in range(8):
            e(f"v_fma_f32 v{vX+k}, v{x[k]}, s{sC}, -v{vTa}")
        for k in range(8):
            e(f"v_exp_f32 v{vX+k}, v{vX+k}")
        e(f"v_add_f32 v{vTa}, v{vX}, v{vX+1}")
        e(f"v_add_f32 v{vTb}, v{vX+2}, v{vX+3}")
        e(f"v_add_f32 v{vTa}, v{vTa}, v{vX+4}")
        e(f"v_add_f32 v{vTb}, v{vTb}, v{vX+5}")
        e(f"v_add_f32 v{vTa}, v{vTa}, v{vX+6}")
        e(f"v_add_f32 v{vTb}, v{vTb}, v{vX+7}")
        e(f"v_add_f32 v{vTa}, v{vTa}, v{vTb}")
        e(f"v_mov_b32 v{vTb}, v{vTa}")
        e("s_nop 1")
        e(f"v_permlane16_swap_b32 v{vTa}, v{vTb}")
        e(f"v_add_f32 v{vTa}, v{vTa}, v{vTb}")
        e(f"v_mov_b32 v{vTb}, v{vTa}")
        e("s_nop 1")
        e(f"v_permlane32_swap_b32 v{vTa}, v{vTb}")
        e(f"v_add_f32 v{vTa}, v{vTa}, v{vTb}")
        e(f"v_rcp_f32 v{vTa}, v{vTa}")
        e("s_nop 0")
        for k in range(8):
            e(f"v_mul_f32 v{vX+k}, v{vX+k}, v{vTa}")
        e(f"v_cvt_pk_bf16_f32 v{vP}, v{vX}, v{vX+1}")
        e(f"v_cvt_pk_bf16_f32 v{vP+1}, v{vX+2}, v{vX+3}")
        e(f"v_cvt_pk_bf16_f32 v{vP+2}, v{vX+4}, v{vX+5}")
        e(f"v_cvt_pk_bf16_f32 v{vP+3}, v{vX+6}, v{vX+7}")
        e(f"v_and_b32 v{vP+4}, v{vP}, v{vM01}")
        e(f"v_and_b32 v{vP+5}, v{vP+1}, v{vM23}")
        e(f"v_xor_b32 v{vP}, v{vP}, v{vP+4}")
        e(f"v_xor_b32 v{vP+1}, v{vP+1}, v{vP+5}")
        e("s_nop 1")
    def pv_om(t):
        for b in range(12):
            r = aV + 12*b + 2*t
            e(f"v_mfma_f32_16x16x32_bf16 v[{vO+4*b}:{vO+4*b+3}], a[{r}:{r+3}], v[{vP}:{vP+3}], 0")
    def pv_new(t):
        for b in range(12):
            r = aV + 12*b + 2*(t+2)
            e(f"v_mfma_f32_16x16x16_bf16 v[{vO+4*b}:{vO+4*b+3}], a[{r}:{r+1}], v[{vP+4}:{vP+5}], v[{vO+4*b}:{vO+4*b+3}]")
    def epilogue(t, slot):
        for b in range(12):
            e(f"v_cvt_pk_bf16_f32 v{vK+2*b}, v{vO+4*b}, v{vO+4*b+1}")
            e(f"v_cvt_pk_bf16_f32 v{vK+2*b+1}, v{vO+4*b+2}, v{vO+4*b+3}")
            if g.direct_store:
                if b & 1:
                    u = b >> 1
                    off = f" offset:{u*64}" if u else ""
                    e(f"buffer_store_dwordx4 v[{vK+4*u}:{vK+4*u+3}], v{vD0}, s[24:27], s{sQ+t} offen{off} {g.stnt}")
                    g.vm.append(("O", t))
            elif b & 1:
                u = b >> 1
                va = vA1 if (u & 1) else vA0
                e(f"ds_write_b128 v{va}, v[{vK+4*u}:{vK+4*u+3}] offset:{slot*TILE + (u>>1)*128}")
        if not g.direct_store:
            for j in range(6):
                e(f"ds_read_b128 v[{vR+4*j}:{vR+4*j+3}], v{vL} offset:{slot*TILE + j*1024}")
            for j in range(6):
                e(f"s_waitcnt lgkmcnt({5-j})")
                off = f" offset:{(j%3)*1024}" if j % 3 else ""
                e(f"buffer_store_dwordx4 v[{vR+4*j}:{vR+4*j+3}], v{vG+j}, s[24:27], s{sQ+t} offen{off} {g.stnt}")
                g.vm.append(("O", t))
            refill(slot)

    g.c("step 0")
    read_qk("K", 0); read_qk("K", 1); read_qk("K", 2); read_qk("Q", 0)
    qk(0, 0); qk(1, 1); qk(2, 2)
    softmax(0)
    read_v(0); read_v(1)
    pv_om(0)
    sl = read_v(2, do_refill=g.direct_store)
    pv_new(0)
    epilogue(0, sl)
    for t in range(1, 4):
        g.c(f"step {t}")
        read_qk("Q", t)
        qk(0, t); qk(1, t+1)
        read_qk("K", t+2)
        qk(2, t+2)
        softmax(t)
        pv_om(t)
        sl = read_v(t+2, do_refill=g.direct_store)
        pv_new(t)
        epilogue(t, sl)
    if g.stamp:
        e("s_waitcnt vmcnt(0)")
        e(f"s_memrealtime s[{sSTAMP+2}:{sSTAMP+3}]")
        e("s_waitcnt lgkmcnt(0)")
        e(f"v_mov_b32 v16, s{sSTAMP}")
        e(f"v_mov_b32 v17, s{sSTAMP+2}")
        e(f"s_lshl_b32 s{sT0}, s2, 2")
        e(f"s_add_u32 s{sT0}, s{sT0}, s{sW}")
        e(f"s_lshl_b32 s{sT0}, s{sT0}, 3")
        e(f"v_mov_b32 v18, s{sT0}")
        e("v_cmp_eq_u32 vcc, 0, v0")
        e("s_and_saveexec_b64 s[62:63], vcc")
        e("global_store_dwordx2 v18, v[16:17], s[60:61]")
    if g.stamp and g.atom:
        e("s_memtime s[66:67]")
        e("s_waitcnt lgkmcnt(0)")
        e("v_mov_b32 v18, 0")
        e("v_not_b32 v19, v16")
        e("global_atomic_umax v18, v19, s[68:69]")
        e("global_atomic_umax v18, v17, s[68:69] offset:4")
        e("global_atomic_umax v18, v16, s[68:69] offset:8")
        e("v_not_b32 v19, v17")
        e("global_atomic_umax v18, v19, s[68:69] offset:12")
        e("s_sub_u32 s66, s66, s64")
        e("v_mov_b32 v20, s66")
        e("v_sub_u32 v21, v17, v16")
        e("global_atomic_add v18, v20, s[68:69] offset:16")
        e("global_atomic_add v18, v21, s[68:69] offset:20")
    if g.spin:
        e("s_waitcnt vmcnt(0)")
        g.lab("L_spin")
        e("s_sleep 2")
        e("s_memrealtime s[66:67]")
        e("s_waitcnt lgkmcnt(0)")
        e("s_sub_u32 s66, s66, s70")
        e(f"s_cmp_lt_u32 s66, {g.spin}")
        e("s_cbranch_scc1 L_spin")
    g.lab("L_end")
    e("s_endpgm")
    acc = (NV + 3)//4*4
    ftr = f""".section .rodata,"a"
.p2align 6
.amdhsa_kernel {KNAME}
  .amdhsa_next_free_vgpr {acc + NA}
  .amdhsa_next_free_sgpr 72
  .amdhsa_accum_offset {acc}
  .amdhsa_group_segment_fixed_size 0
  .amdhsa_kernarg_size 48
  .amdhsa_user_sgpr_count 2
  .amdhsa_user_sgpr_kernarg_segment_ptr 1
  .amdhsa_system_sgpr_workgroup_id_x 1
  .amdhsa_float_denorm_mode_32 3
.end_amdhsa_kernel
"""
    return "\n".join(top + g.L) + "\n" + ftr

if __name__ == "__main__":
    import argparse
    ap = argparse.ArgumentParser()
    ap.add_argument("out")
    ap.add_argument("--ld", default="nt")
    ap.add_argument("--st", default="")
    ap.add_argument("--sh", default=None)
    ap.add_argument("--stamp", action="store_true")
    ap.add_argument("--direct", action="store_true")
    ap.add_argument("--noalt", action="store_true")
    ap.add_argument("--noxcd", action="store_true")
    ap.add_argument("--spin", type=int, default=0)
    ap.add_argument("--atom", action="store_true")
    a = ap.parse_args()
    open(a.out, "w").write(gen(ldnt=a.ld, stnt=a.st, stamp=a.stamp, direct_store=a.direct, shared_pol=a.sh, alt=not a.noalt, xcd=not a.noxcd, spin=a.spin, atom=a.atom))
```

```python
import sys, struct, math

KNAME = "standalone__sliding_local_fixed_window__prompt_kernel"
NB = 25165824
TILE = 6144
SLOT = 3*TILE
NSLOT = 8
FLAG = NSLOT*SLOT
LDS_BYTES = FLAG + 256 + 4*256

def f2u(x):
    return struct.unpack("<I", struct.pack("<f", x))[0]

SRD = {"Q": 12, "K": 16, "V": 20, "O": 24}
sW = 28
sHS = 29
sC = 30
sSTR = 31
sMASK = 32
sKV = 40
sQ = 41
sHB = 42
sKVc = 43
sSL = 44
sM = 45
sT0, sT1, sT2, sT3 = 46, 47, 48, 49
sDIR = 50
sN = 52
sB0, sB1, sB2 = 53, 54, 55
sCNT = 56
sNEED = 57

vG = 1
vA, vT, vL, vF = 7, 8, 9, 10
vM01, vM23 = 11, 12
vAd = 13
vTd = 19
vLd = 25
vTa, vTb = 26, 27
vX = 28
vP = 36
vDN = 42
vD0 = 43
vO = 44
vS = vO
vQ = 92
vK = 116
vVom = 188
NV = 236

class Gen:
    def __init__(self):
        self.L = []
    def e(self, s): self.L.append("  " + s)
    def lab(self, s): self.L.append(s + ":")
    def c(self, s): self.L.append("  ; " + s)

def gen(ld="", st="", W=36, stamp=False, spin=0, alt=True, xcd=True, direct=False, ldq=None, sleep=1, pf=False):
    g = Gen(); e = g.e
    ldq = ld if ldq is None else ldq
    def stp(k):
        if stamp:
            e(f"s_memrealtime s[{72+2*k}:{73+2*k}]")
    hdr = open("standalone__sliding_local_fixed_window__prompt.s.ref").read().split("\n")
    top = []
    for l in hdr:
        if l.startswith("; @launch"):
            break
        top.append(l)
    top.append(f"; @launch grid=(256,1,1) block=(320,1,1) lds={LDS_BYTES}")
    top += ['.amdgcn_target "amdgcn-amd-amdhsa--gfx950"', ".text", f".globl {KNAME}", ".p2align 8", f".type {KNAME},@function", f"{KNAME}:"]

    if spin:
        e("s_memrealtime s[70:71]")
    if stamp:
        e("s_memrealtime s[64:65]")
        e("s_load_dwordx2 s[60:61], s[0:1], 40")
    e("s_load_dwordx2 s[16:17], s[0:1], 8")
    e("s_load_dwordx2 s[20:21], s[0:1], 16")
    e("s_load_dwordx2 s[12:13], s[0:1], 0")
    e("s_load_dwordx2 s[24:25], s[0:1], 24")
    e("s_cmp_ge_u32 s2, 256")
    e("s_cbranch_scc1 L_end")
    e("v_lshrrev_b32 v13, 6, v0")
    e(f"v_lshlrev_b32 v{vF}, 2, v0")
    e(f"v_readfirstlane_b32 s{sW}, v13")
    e("v_mov_b32 v14, 0")
    e(f"v_add_u32 v{vF}, {FLAG}, v{vF}")
    e("v_and_b32 v0, 63, v0")
    e(f"ds_write_b32 v{vF}, v14")
    e("v_lshrrev_b32 v17, 3, v0")
    e(f"v_lshlrev_b32 v{vL}, 4, v0")
    for j in range(3):
        e(f"v_add_u32 v18, {8*j}, v17")
        e(f"v_mul_u32_u24 v18, 11, v18")
        e(f"v_lshrrev_b32 v18, 5, v18")
        e(f"v_lshlrev_b32 v18, 4, v18")
        e(f"v_xor_b32 v{vG+j}, v18, v{vL}")
        e(f"v_add_u32 v{vG+3+j}, 3072, v{vG+j}")
    for n in "QKVO":
        e(f"s_mov_b32 s{SRD[n]+2}, {NB}")
        e(f"s_mov_b32 s{SRD[n]+3}, 0x20000")
    if xcd:
        e(f"s_and_b32 s{sT0}, s2, 7")
        e(f"s_lshl_b32 s{sT0}, s{sT0}, 5")
        e(f"s_lshr_b32 s{sT1}, s2, 3")
        e(f"s_add_u32 s{sT0}, s{sT0}, s{sT1}")
    else:
        e(f"s_mov_b32 s{sT0}, s2")
    e(f"s_and_b32 s{sHS}, s{sT0}, 7")
    e(f"s_mul_i32 s{sT1}, s{sT0}, {16*TILE}")
    e(f"s_lshr_b32 s{sHB}, s{sT0}, 3")
    e(f"s_mul_i32 s{sHB}, s{sHB}, 786432")
    if alt:
        e(f"s_bitcmp0_b32 s{sT0}, 0")
    else:
        e(f"s_cmp_eq_u32 s{sT0}, s{sT0}")
    e(f"s_cselect_b64 s[{sDIR}:{sDIR+1}], -1, 0")
    e(f"s_cselect_b32 s{sSTR}, -1, 1")
    e(f"s_cselect_b32 s{sQ}, 15, 0")
    e(f"s_cselect_b32 s{sKV}, 15, -2")
    e(f"s_mul_i32 s{sSTR}, s{sSTR}, {TILE}")
    e(f"s_mul_i32 s{sQ}, s{sQ}, {TILE}")
    e(f"s_mul_i32 s{sKV}, s{sKV}, {TILE}")
    e(f"s_add_u32 s{sQ}, s{sQ}, s{sT1}")
    e(f"s_add_u32 s{sKV}, s{sKV}, s{sT1}")
    e(f"s_cmp_lg_u32 s{sW}, 0")
    e("s_cbranch_scc1 L_consumer")

    g.c("loader wave")
    e("s_setprio 3")
    e(f"s_add_u32 s{sT2}, s{sKV}, s{sSTR}")
    e("s_waitcnt lgkmcnt(0)")
    stp(0)
    def grp(name, so, ldsoff_imm, hf, base=None):
        srd = SRD[name]
        pol = ldq if name == "Q" else ld
        if base is None:
            e(f"s_mov_b32 m0, {ldsoff_imm + hf*3072}")
        else:
            e(f"s_add_u32 m0, s{base}, {ldsoff_imm + hf*3072}")
        e("s_nop 0")
        for j in range(3):
            off = f" offset:{j*1024}" if j else ""
            e(f"buffer_load_dwordx4 v{vG+hf*3+j}, s[{srd}:{srd+3}], s{so} offen{off} {pol} lds")
    for hf in range(2): grp("K", sKV, TILE, hf)
    for hf in range(2): grp("K", sT2, SLOT + TILE, hf)
    e("s_barrier")
    for hf in range(2): grp("V", sKV, 2*TILE, hf)
    for hf in range(2): grp("V", sT2, SLOT + 2*TILE, hf)
    e(f"s_add_u32 s{sKV}, s{sT2}, s{sSTR}")
    e(f"s_mov_b32 s{sSL}, {2*SLOT}")
    e(f"s_mov_b32 s{sM}, 0")
    w = W // 3
    assert W % 3 == 0 and W + 3 <= 63
    sigpos = {}
    for gi in range(6):
        r = (gi - w) % 6
        q = (gi - w - r) // 6
        if r == 4: sigpos[gi] = 2*q + 1
        if r == 0: sigpos[gi] = 2*(q-1) + 2
    e(f"s_mov_b32 s{sCNT}, 0")
    g.lab("L_ld_loop")
    e(f"s_max_i32 s{sKVc}, s{sKV}, s{sHB}")
    e(f"s_cmp_lt_u32 s{sM}, 6")
    e("s_cbranch_scc1 L_ld_free")
    e(f"s_sub_u32 s{sT0}, s{sM}, 6")
    e(f"s_and_b32 s{sT1}, s{sT0}, 3")
    e(f"s_lshr_b32 s{sT0}, s{sT0}, 2")
    e(f"s_lshl_b32 s{sT1}, s{sT1}, 8")
    e(f"s_add_u32 s{sT1}, s{sT1}, {FLAG+256}")
    e(f"v_mov_b32 v{vDN}, s{sT1}")
    g.lab("L_ld_poll")
    e(f"ds_read_b32 v13, v{vDN}")
    e("s_waitcnt lgkmcnt(0)")
    e(f"v_readfirstlane_b32 s{sT1}, v13")
    e(f"s_cmp_gt_u32 s{sT1}, s{sT0}")
    e("s_cbranch_scc0 L_ld_poll")
    g.lab("L_ld_free")
    seq = [("Q", sQ, 0), ("Q", sQ, 0), ("K", sKVc, TILE), ("K", sKVc, TILE), ("V", sKVc, 2*TILE), ("V", sKVc, 2*TILE)]
    for gi in range(6):
        e(f"s_waitcnt vmcnt({W})")
        if gi in sigpos:
            e(f"s_add_i32 s{sT0}, s{sCNT}, {sigpos[gi]}")
            e(f"s_max_i32 s{sT0}, s{sT0}, 0")
            e(f"v_mov_b32 v13, s{sT0}")
            e(f"ds_write_b32 v{vF}, v13")
        nm, so, lo = seq[gi]
        grp(nm, so, lo, gi & 1, base=sSL)
    e(f"s_add_u32 s{sKV}, s{sKV}, s{sSTR}")
    e(f"s_add_u32 s{sQ}, s{sQ}, s{sSTR}")
    e(f"s_add_u32 s{sSL}, s{sSL}, {SLOT}")
    e(f"s_cmp_eq_u32 s{sSL}, {NSLOT*SLOT}")
    e(f"s_cselect_b32 s{sSL}, 0, s{sSL}")
    e(f"s_add_u32 s{sCNT}, s{sCNT}, 2")
    e(f"s_add_u32 s{sM}, s{sM}, 1")
    e(f"s_cmp_lt_u32 s{sM}, 16")
    e("s_cbranch_scc1 L_ld_loop")
    stp(1)
    for landed in range(96 - w, 97):
        if landed % 6 == 4 or landed % 6 == 0:
            cnt = 2*(landed//6) + 1 if landed % 6 == 4 else 2*(landed//6)
            e(f"s_waitcnt vmcnt({3*(96-landed)})")
            e(f"v_mov_b32 v13, {cnt}")
            e(f"ds_write_b32 v{vF}, v13")
    stp(2)
    e("s_branch L_fin")

    g.lab("L_consumer")
    e("v_and_b32 v16, 15, v0")
    e("v_lshrrev_b32 v17, 4, v0")
    e("v_and_b32 v18, 7, v0")
    e("v_xor_b32 v18, v18, v17")
    e("v_lshlrev_b32 v18, 4, v18")
    e("v_mul_u32_u24 v19, 384, v16")
    e(f"v_add_u32 v{vA}, v18, v19")
    if direct:
        e("v_lshlrev_b32 v18, 4, v17")
        e(f"v_add_u32 v{vD0}, v18, v19")
    e("v_lshrrev_b32 v18, 2, v0")
    e("v_and_b32 v19, 3, v0")
    e("v_and_b32 v20, 7, v18")
    e("v_xor_b32 v19, v19, v20")
    e("v_lshlrev_b32 v19, 4, v19")
    e("v_mul_u32_u24 v18, 384, v18")
    e(f"v_add_u32 v{vT}, v18, v19")
    e("v_lshlrev_b32 v17, 2, v17")
    for r in range(4):
        e(f"v_add_u32 v18, {r}, v17")
        e(f"v_cmp_le_u32 s[{sMASK+2*r}:{sMASK+2*r+1}], v18, v16")
    e("s_nop 1")
    for r in range(4):
        e(f"s_xor_b64 s[{sMASK+2*r}:{sMASK+2*r+1}], s[{sMASK+2*r}:{sMASK+2*r+1}], s[{sDIR}:{sDIR+1}]")
    e("v_mov_b32 v18, 0xffff")
    e("v_mov_b32 v19, 0xffff0000")
    e(f"v_cndmask_b32 v20, 0, v18, s[{sMASK}:{sMASK+1}]")
    e(f"v_cndmask_b32 v21, 0, v19, s[{sMASK+2}:{sMASK+3}]")
    e(f"v_or_b32 v{vM01}, v20, v21")
    e(f"v_cndmask_b32 v20, 0, v18, s[{sMASK+4}:{sMASK+5}]")
    e(f"v_cndmask_b32 v21, 0, v19, s[{sMASK+6}:{sMASK+7}]")
    e(f"v_or_b32 v{vM23}, v20, v21")
    e(f"s_mov_b32 s{sC}, 0x{f2u(math.log2(math.e)/math.sqrt(192.0)):08x}")
    e(f"v_mov_b32 v{vDN}, {FLAG}")
    e(f"s_sub_u32 s{sN}, s{sW}, 1")
    e(f"s_mul_i32 s{sT0}, s{sN}, s{sSTR}")
    e(f"s_add_u32 s{sQ}, s{sQ}, s{sT0}")
    e(f"s_lshl_b32 s{sSTR}, s{sSTR}, 2")
    e(f"s_mov_b32 s{sM}, 0")
    e("s_waitcnt lgkmcnt(0)")
    e("s_barrier")
    g.lab("L_step")
    for x in range(3):
        e(f"s_add_u32 s{sT0}, s{sN}, {x}")
        e(f"s_and_b32 s{sT0}, s{sT0}, 7")
        e(f"s_mul_i32 s{sB0+x}, s{sT0}, {SLOT}")
    for x in range(3):
        e(f"v_add_u32 v{vAd+2*x}, s{sB0+x}, v{vA}")
        e(f"v_add_u32 v{vTd+2*x}, s{sB0+x}, v{vT}")
        e(f"v_xor_b32 v{vAd+2*x+1}, 64, v{vAd+2*x}")
        e(f"v_xor_b32 v{vTd+2*x+1}, 64, v{vTd+2*x}")
    e(f"v_add_u32 v{vLd}, s{sB2}, v{vL}")
    e(f"s_lshl_b32 s{sNEED}, s{sN}, 1")
    def poll(name):
        g.lab(name)
        e(f"ds_read_b32 v{vTa}, v{vDN}")
        e("s_waitcnt lgkmcnt(0)")
        e(f"v_readfirstlane_b32 s{sT0}, v{vTa}")
        e(f"s_cmp_gt_u32 s{sT0}, s{sNEED}")
        e(f"s_cbranch_scc1 {name}_ok")
        if sleep: e(f"s_sleep {sleep}")
        e(f"s_branch {name}")
        g.lab(name + "_ok")
    poll("L_pa")
    def rd128(dst, x, off):
        for s in range(6):
            e(f"ds_read_b128 v[{dst+4*s}:{dst+4*s+3}], v{vAd+2*x+(s&1)} offset:{off + (s>>1)*128}")
    def qk(x):
        d = vS + 4*x
        kb = vK + 24*x
        for s in range(6):
            cc = "0" if s == 0 else f"v[{d}:{d+3}]"
            e(f"v_mfma_f32_16x16x32_bf16 v[{d}:{d+3}], v[{kb+4*s}:{kb+4*s+3}], v[{vQ+4*s}:{vQ+4*s+3}], {cc}")
    def rdv(x, b):
        u, ee = b >> 1, b & 1
        r = vVom + 4*b + 2*x if x < 2 else vQ + 2*b
        e(f"ds_read_b64_tr_b16 v[{r}:{r+1}], v{vTd+2*x+(u&1)} offset:{2*TILE + (u>>1)*128 + 8*ee}")
    rd128(vQ, 2, 0)
    rd128(vK, 0, TILE)
    e("s_waitcnt lgkmcnt(3)")
    rd128(vK+24, 1, TILE)
    rd128(vK+48, 2, TILE)
    e("s_waitcnt lgkmcnt(12)")
    qk(0)
    e("s_waitcnt lgkmcnt(6)")
    qk(1)
    e("s_waitcnt lgkmcnt(0)")
    qk(2)
    for b in range(12):
        rdv(0, b)
        rdv(1, b)
    e(f"s_cmp_lg_u32 s{sHS}, 0")
    e(f"s_cbranch_scc1 L_nohs")
    e(f"s_cmp_lt_u32 s{sN}, 14")
    e(f"s_cbranch_scc1 L_nohs")
    for r in range(4):
        e(f"v_mov_b32 v{vS+8+r}, 0xff800000")
    e(f"s_cmp_lt_u32 s{sN}, 15")
    e(f"s_cbranch_scc1 L_nohs")
    for r in range(4):
        e(f"v_mov_b32 v{vS+4+r}, 0xff800000")
    g.lab("L_nohs")
    for r in range(4):
        e(f"v_cndmask_b32 v{vS+r}, v{vS+r}, v{vS+8+r}, s[{sMASK+2*r}:{sMASK+2*r+1}]")
    x = [vS+k for k in range(8)]
    e(f"v_max3_f32 v{vTa}, v{x[4]}, v{x[5]}, v{x[6]}")
    e(f"v_max3_f32 v{vTb}, v{x[0]}, v{x[1]}, v{x[7]}")
    e(f"v_max3_f32 v{vTa}, v{vTa}, v{x[2]}, v{x[3]}")
    e(f"v_max_f32 v{vTa}, v{vTa}, v{vTb}")
    e(f"v_mov_b32 v{vTb}, v{vTa}")
    e("s_nop 1")
    e(f"v_permlane16_swap_b32 v{vTa}, v{vTb}")
    e(f"v_max_f32 v{vTa}, v{vTa}, v{vTb}")
    e(f"v_mov_b32 v{vTb}, v{vTa}")
    e("s_nop 1")
    e(f"v_permlane32_swap_b32 v{vTa}, v{vTb}")
    e(f"v_max_f32 v{vTa}, v{vTa}, v{vTb}")
    e(f"v_mul_f32 v{vTa}, s{sC}, v{vTa}")
    for k in range(8):
        e(f"v_fma_f32 v{vX+k}, v{x[k]}, s{sC}, -v{vTa}")
    for k in range(8):
        e(f"v_exp_f32 v{vX+k}, v{vX+k}")
    e(f"v_add_f32 v{vTa}, v{vX}, v{vX+1}")
    e(f"v_add_f32 v{vTb}, v{vX+2}, v{vX+3}")
    e(f"v_add_f32 v{vTa}, v{vTa}, v{vX+4}")
    e(f"v_add_f32 v{vTb}, v{vTb}, v{vX+5}")
    e(f"v_add_f32 v{vTa}, v{vTa}, v{vX+6}")
    e(f"v_add_f32 v{vTb}, v{vTb}, v{vX+7}")
    e(f"v_add_f32 v{vTa}, v{vTa}, v{vTb}")
    e(f"v_mov_b32 v{vTb}, v{vTa}")
    e("s_nop 1")
    e(f"v_permlane16_swap_b32 v{vTa}, v{vTb}")
    e(f"v_add_f32 v{vTa}, v{vTa}, v{vTb}")
    e(f"v_mov_b32 v{vTb}, v{vTa}")
    e("s_nop 1")
    e(f"v_permlane32_swap_b32 v{vTa}, v{vTb}")
    e(f"v_add_f32 v{vTa}, v{vTa}, v{vTb}")
    e(f"v_rcp_f32 v{vTa}, v{vTa}")
    e(f"s_add_u32 s{sNEED}, s{sNEED}, 1")
    for k in range(8):
        e(f"v_mul_f32 v{vX+k}, v{vX+k}, v{vTa}")
    e(f"v_cvt_pk_bf16_f32 v{vP}, v{vX}, v{vX+1}")
    e(f"v_cvt_pk_bf16_f32 v{vP+1}, v{vX+2}, v{vX+3}")
    e(f"v_cvt_pk_bf16_f32 v{vP+2}, v{vX+4}, v{vX+5}")
    e(f"v_cvt_pk_bf16_f32 v{vP+3}, v{vX+6}, v{vX+7}")
    e(f"v_and_b32 v{vP+4}, v{vP}, v{vM01}")
    e(f"v_and_b32 v{vP+5}, v{vP+1}, v{vM23}")
    e(f"v_xor_b32 v{vP}, v{vP}, v{vP+4}")
    e(f"v_xor_b32 v{vP+1}, v{vP+1}, v{vP+5}")
    poll("L_pb")
    for b in range(12):
        rdv(2, b)
    for b in range(12):
        r = vVom + 4*b
        e(f"v_mfma_f32_16x16x32_bf16 v[{vO+4*b}:{vO+4*b+3}], v[{r}:{r+3}], v[{vP}:{vP+3}], 0")
    e("s_waitcnt lgkmcnt(0)")
    for b in range(12):
        r = vQ + 2*b
        e(f"v_mfma_f32_16x16x16_bf16 v[{vO+4*b}:{vO+4*b+3}], v[{r}:{r+1}], v[{vP+4}:{vP+5}], v[{vO+4*b}:{vO+4*b+3}]")
    vPK, vR = vK, vK + 24
    e(f"s_add_u32 s{sM}, s{sM}, 1")
    for b in range(12):
        e(f"v_cvt_pk_bf16_f32 v{vPK+2*b}, v{vO+4*b}, v{vO+4*b+1}")
        e(f"v_cvt_pk_bf16_f32 v{vPK+2*b+1}, v{vO+4*b+2}, v{vO+4*b+3}")
        if b & 1:
            u = b >> 1
            if direct:
                off = f" offset:{u*64}" if u else ""
                e(f"buffer_store_dwordx4 v[{vPK+4*u}:{vPK+4*u+3}], v{vD0}, s[24:27], s{sQ} offen{off} {st}")
            else:
                e(f"ds_write_b128 v{vAd+4+(u&1)}, v[{vPK+4*u}:{vPK+4*u+3}] offset:{(u>>1)*128}")
    e(f"v_mov_b32 v{vTa}, s{sM}")
    if not direct:
        for j in range(6):
            e(f"ds_read_b128 v[{vR+4*j}:{vR+4*j+3}], v{vLd} offset:{j*1024}")
        e(f"ds_write_b32 v{vF}, v{vTa}")
        for j in range(6):
            e(f"s_waitcnt lgkmcnt({6-j})")
            off = f" offset:{(j%3)*1024}" if j % 3 else ""
            e(f"buffer_store_dwordx4 v[{vR+4*j}:{vR+4*j+3}], v{vG+j}, s[24:27], s{sQ} offen{off} {st}")
    else:
        e(f"ds_write_b32 v{vF}, v{vTa}")
    if stamp:
        for k in range(4):
            e(f"s_cmp_eq_u32 s{sM}, {k+1}")
            e(f"s_cbranch_scc0 L_st{k}")
            stp(4+k)
            g.lab(f"L_st{k}")
    e(f"s_add_u32 s{sN}, s{sN}, 4")
    e(f"s_add_u32 s{sQ}, s{sQ}, s{sSTR}")
    e(f"s_cmp_lt_u32 s{sM}, 4")
    e("s_cbranch_scc1 L_step")
    g.lab("L_fin")
    if stamp:
        e("s_waitcnt vmcnt(0)")
        e("s_memrealtime s[66:67]")
        e("s_waitcnt lgkmcnt(0)")
        e("v_mov_b32 v16, s64")
        e("v_mov_b32 v17, s66")
        e(f"s_mul_i32 s{sT0}, s2, 5")
        e(f"s_add_u32 s{sT0}, s{sT0}, s{sW}")
        e(f"s_lshl_b32 s{sT0}, s{sT0}, 3")
        e(f"v_mov_b32 v18, s{sT0}")
        e("v_cmp_eq_u32 vcc, 0, v0")
        e("s_and_saveexec_b64 s[62:63], vcc")
        e("global_store_dwordx2 v18, v[16:17], s[60:61]")
        for k in range(8):
            e(f"v_mov_b32 v{20+k}, s{72+2*k}")
        e("v_lshlrev_b32 v18, 2, v18")
        e("v_add_u32 v18, 65536, v18")
        e("global_store_dwordx4 v18, v[20:23], s[60:61]")
        e("global_store_dwordx4 v18, v[24:27], s[60:61] offset:16")
    if spin:
        e("s_waitcnt vmcnt(0)")
        g.lab("L_spin")
        e("s_sleep 2")
        e("s_memrealtime s[66:67]")
        e("s_waitcnt lgkmcnt(0)")
        e("s_sub_u32 s66, s66, s70")
        e(f"s_cmp_lt_u32 s66, {spin}")
        e("s_cbranch_scc1 L_spin")
    g.lab("L_end")
    e("s_endpgm")
    acc = (NV + 3)//4*4
    ftr = f""".section .rodata,"a"
.p2align 6
.amdhsa_kernel {KNAME}
  .amdhsa_next_free_vgpr {NV}
  .amdhsa_next_free_sgpr {90 if (stamp or spin) else 60}
  .amdhsa_accum_offset {acc}
  .amdhsa_group_segment_fixed_size 0
  .amdhsa_kernarg_size 48
  .amdhsa_user_sgpr_count 2
  .amdhsa_user_sgpr_kernarg_segment_ptr 1
  .amdhsa_system_sgpr_workgroup_id_x 1
  .amdhsa_float_denorm_mode_32 3
.end_amdhsa_kernel
"""
    return "\n".join(top + g.L) + "\n" + ftr

if __name__ == "__main__":
    import argparse
    ap = argparse.ArgumentParser()
    ap.add_argument("out")
    ap.add_argument("--ld", default="")
    ap.add_argument("--ldq", default=None)
    ap.add_argument("--st", default="")
    ap.add_argument("--W", type=int, default=36)
    ap.add_argument("--stamp", action="store_true")
    ap.add_argument("--direct", action="store_true")
    ap.add_argument("--noalt", action="store_true")
    ap.add_argument("--noxcd", action="store_true")
    ap.add_argument("--spin", type=int, default=0)
    a = ap.parse_args()
    open(a.out, "w").write(gen(ld=a.ld, ldq=a.ldq, st=a.st, W=a.W, stamp=a.stamp, direct=a.direct, alt=not a.noalt, xcd=not a.noxcd, spin=a.spin))
```

```python
import sys, struct, math

KNAME = "standalone__sliding_local_fixed_window__prompt_kernel"
NB = 25165824
TILE = 6144
SLOT = 3*TILE
NSLOT = 8
FLAG = NSLOT*SLOT
LDS_BYTES = FLAG + 256 + 4*256

def f2u(x):
    return struct.unpack("<I", struct.pack("<f", x))[0]

SRD = {"Q": 12, "K": 16, "V": 20, "O": 24}
sW = 28
sHS = 29
sC = 30
sSTR = 31
sMASK = 32
sKV = 40
sQ = 41
sHB = 42
sKVc = 43
sSL = 44
sM = 45
sT0, sT1, sT2, sT3 = 46, 47, 48, 49
sDIR = 50
sN = 52
sB0, sB1, sB2 = 53, 54, 55
sCNT = 56
sNEED = 57

vG = 1
vA, vT, vL, vF = 7, 8, 9, 10
vM01, vM23 = 11, 12
vAd = 13
vTd = 19
vLd = 25
vTa, vTb = 26, 27
vP = 28
vDN = 34
vD0 = 35
vO = 36
vS = vO
vX = vO + 12
vQ = 84
vK = 108
vVom = vK
NV = 180
NA = 72

class Gen:
    def __init__(self):
        self.L = []
    def e(self, s): self.L.append("  " + s)
    def lab(self, s): self.L.append(s + ":")
    def c(self, s): self.L.append("  ; " + s)

def gen(ld="", st="", W=36, stamp=False, spin=0, alt=True, xcd=True, direct=False, ldq=None, sleep=1, pf=False, nostore=False, early=0):
    g = Gen(); e = g.e
    ldq = ld if ldq is None else ldq
    def stp(k):
        if stamp:
            e(f"s_memrealtime s[{72+2*k}:{73+2*k}]")
    hdr = open("standalone__sliding_local_fixed_window__prompt.s.ref").read().split("\n")
    top = []
    for l in hdr:
        if l.startswith("; @launch"):
            break
        top.append(l)
    top.append(f"; @launch grid=(256,1,1) block=(320,1,1) lds={LDS_BYTES}")
    top += ['.amdgcn_target "amdgcn-amd-amdhsa--gfx950"', ".text", f".globl {KNAME}", ".p2align 8", f".type {KNAME},@function", f"{KNAME}:"]

    if spin:
        e("s_memrealtime s[70:71]")
    if stamp:
        e("s_memrealtime s[64:65]")
        e("s_load_dwordx2 s[60:61], s[0:1], 40")
    e("s_load_dwordx2 s[16:17], s[0:1], 8")
    e("s_load_dwordx2 s[20:21], s[0:1], 16")
    e("s_load_dwordx2 s[12:13], s[0:1], 0")
    e("s_load_dwordx2 s[24:25], s[0:1], 24")
    e("s_cmp_ge_u32 s2, 256")
    e("s_cbranch_scc1 L_end")
    e("v_lshrrev_b32 v13, 6, v0")
    e(f"v_lshlrev_b32 v{vF}, 2, v0")
    e(f"v_readfirstlane_b32 s{sW}, v13")
    e("v_mov_b32 v14, 0")
    e(f"v_add_u32 v{vF}, {FLAG}, v{vF}")
    e("v_and_b32 v0, 63, v0")
    e(f"ds_write_b32 v{vF}, v14")
    e("v_lshrrev_b32 v17, 3, v0")
    e(f"v_lshlrev_b32 v{vL}, 4, v0")
    for j in range(3):
        e(f"v_add_u32 v18, {8*j}, v17")
        e(f"v_mul_u32_u24 v18, 11, v18")
        e(f"v_lshrrev_b32 v18, 5, v18")
        e(f"v_lshlrev_b32 v18, 4, v18")
        e(f"v_xor_b32 v{vG+j}, v18, v{vL}")
        e(f"v_add_u32 v{vG+3+j}, 3072, v{vG+j}")
    for n in "QKVO":
        e(f"s_mov_b32 s{SRD[n]+2}, {NB}")
        e(f"s_mov_b32 s{SRD[n]+3}, 0x20000")
    if xcd:
        e(f"s_and_b32 s{sT0}, s2, 7")
        e(f"s_lshl_b32 s{sT0}, s{sT0}, 5")
        e(f"s_lshr_b32 s{sT1}, s2, 3")
        e(f"s_add_u32 s{sT0}, s{sT0}, s{sT1}")
    else:
        e(f"s_mov_b32 s{sT0}, s2")
    e(f"s_and_b32 s{sHS}, s{sT0}, 7")
    e(f"s_mul_i32 s{sT1}, s{sT0}, {16*TILE}")
    e(f"s_lshr_b32 s{sHB}, s{sT0}, 3")
    e(f"s_mul_i32 s{sHB}, s{sHB}, 786432")
    if alt:
        e(f"s_bitcmp0_b32 s{sT0}, 0")
    else:
        e(f"s_cmp_eq_u32 s{sT0}, s{sT0}")
    e(f"s_cselect_b64 s[{sDIR}:{sDIR+1}], -1, 0")
    e(f"s_cselect_b32 s{sSTR}, -1, 1")
    e(f"s_cselect_b32 s{sQ}, 15, 0")
    e(f"s_cselect_b32 s{sKV}, 15, -2")
    e(f"s_mul_i32 s{sSTR}, s{sSTR}, {TILE}")
    e(f"s_mul_i32 s{sQ}, s{sQ}, {TILE}")
    e(f"s_mul_i32 s{sKV}, s{sKV}, {TILE}")
    e(f"s_add_u32 s{sQ}, s{sQ}, s{sT1}")
    e(f"s_add_u32 s{sKV}, s{sKV}, s{sT1}")
    e(f"s_cmp_lg_u32 s{sW}, 0")
    e("s_cbranch_scc1 L_consumer")

    g.c("loader wave")
    e("s_setprio 3")
    e(f"s_add_u32 s{sT2}, s{sKV}, s{sSTR}")
    e("s_waitcnt lgkmcnt(0)")
    stp(0)
    def grp(name, so, ldsoff_imm, hf, base=None):
        srd = SRD[name]
        pol = ldq if name == "Q" else ld
        if base is None:
            e(f"s_mov_b32 m0, {ldsoff_imm + hf*3072}")
        else:
            e(f"s_add_u32 m0, s{base}, {ldsoff_imm + hf*3072}")
        e("s_nop 0")
        for j in range(3):
            off = f" offset:{j*1024}" if j else ""
            e(f"buffer_load_dwordx4 v{vG+hf*3+j}, s[{srd}:{srd+3}], s{so} offen{off} {pol} lds")
    for hf in range(2): grp("K", sKV, TILE, hf)
    for hf in range(2): grp("K", sT2, SLOT + TILE, hf)
    e("s_barrier")
    for hf in range(2): grp("V", sKV, 2*TILE, hf)
    for hf in range(2): grp("V", sT2, SLOT + 2*TILE, hf)
    e(f"s_add_u32 s{sKV}, s{sT2}, s{sSTR}")
    e(f"s_mov_b32 s{sSL}, {2*SLOT}")
    e(f"s_mov_b32 s{sM}, 0")
    w = W // 3
    assert W % 3 == 0 and W + 3 <= 63
    sigpos = {}
    for gi in range(6):
        r = (gi - w) % 6
        q = (gi - w - r) // 6
        if r == 4: sigpos[gi] = 2*q + 1
        if r == 0: sigpos[gi] = 2*(q-1) + 2
    e(f"s_mov_b32 s{sCNT}, 0")
    g.lab("L_ld_loop")
    e(f"s_max_i32 s{sKVc}, s{sKV}, s{sHB}")
    e(f"s_cmp_lt_u32 s{sM}, 6")
    e("s_cbranch_scc1 L_ld_free")
    e(f"s_sub_u32 s{sT0}, s{sM}, 6")
    e(f"s_and_b32 s{sT1}, s{sT0}, 3")
    e(f"s_lshr_b32 s{sT0}, s{sT0}, 2")
    e(f"s_lshl_b32 s{sT1}, s{sT1}, 8")
    e(f"s_add_u32 s{sT1}, s{sT1}, {FLAG+256}")
    e(f"v_mov_b32 v{vDN}, s{sT1}")
    g.lab("L_ld_poll")
    e(f"ds_read_b32 v13, v{vDN}")
    e("s_waitcnt lgkmcnt(0)")
    e(f"v_readfirstlane_b32 s{sT1}, v13")
    e(f"s_cmp_gt_u32 s{sT1}, s{sT0}")
    e("s_cbranch_scc0 L_ld_poll")
    g.lab("L_ld_free")
    seq = [("Q", sQ, 0), ("Q", sQ, 0), ("K", sKVc, TILE), ("K", sKVc, TILE), ("V", sKVc, 2*TILE), ("V", sKVc, 2*TILE)]
    for gi in range(6):
        e(f"s_waitcnt vmcnt({W})")
        if gi in sigpos:
            e(f"s_add_i32 s{sT0}, s{sCNT}, {sigpos[gi]}")
            e(f"s_max_i32 s{sT0}, s{sT0}, 0")
            e(f"v_mov_b32 v13, s{sT0}")
            e(f"ds_write_b32 v{vF}, v13")
        nm, so, lo = seq[gi]
        grp(nm, so, lo, gi & 1, base=sSL)
    e(f"s_add_u32 s{sKV}, s{sKV}, s{sSTR}")
    e(f"s_add_u32 s{sQ}, s{sQ}, s{sSTR}")
    e(f"s_add_u32 s{sSL}, s{sSL}, {SLOT}")
    e(f"s_cmp_eq_u32 s{sSL}, {NSLOT*SLOT}")
    e(f"s_cselect_b32 s{sSL}, 0, s{sSL}")
    e(f"s_add_u32 s{sCNT}, s{sCNT}, 2")
    e(f"s_add_u32 s{sM}, s{sM}, 1")
    e(f"s_cmp_lt_u32 s{sM}, 16")
    e("s_cbranch_scc1 L_ld_loop")
    stp(1)
    for landed in range(96 - w, 97):
        if landed % 6 == 4 or landed % 6 == 0:
            cnt = 2*(landed//6) + 1 if landed % 6 == 4 else 2*(landed//6)
            e(f"s_waitcnt vmcnt({3*(96-landed)})")
            e(f"v_mov_b32 v13, {cnt}")
            e(f"ds_write_b32 v{vF}, v13")
    stp(2)
    e("s_branch L_fin")

    g.lab("L_consumer")
    e("v_and_b32 v16, 15, v0")
    e("v_lshrrev_b32 v17, 4, v0")
    e("v_and_b32 v18, 7, v0")
    e("v_xor_b32 v18, v18, v17")
    e("v_lshlrev_b32 v18, 4, v18")
    e("v_mul_u32_u24 v19, 384, v16")
    e(f"v_add_u32 v{vA}, v18, v19")
    if direct:
        e("v_lshlrev_b32 v18, 4, v17")
        e(f"v_add_u32 v{vD0}, v18, v19")
    e("v_lshrrev_b32 v18, 2, v0")
    e("v_and_b32 v19, 3, v0")
    e("v_and_b32 v20, 7, v18")
    e("v_xor_b32 v19, v19, v20")
    e("v_lshlrev_b32 v19, 4, v19")
    e("v_mul_u32_u24 v18, 384, v18")
    e(f"v_add_u32 v{vT}, v18, v19")
    e("v_lshlrev_b32 v17, 2, v17")
    for r in range(4):
        e(f"v_add_u32 v18, {r}, v17")
        e(f"v_cmp_le_u32 s[{sMASK+2*r}:{sMASK+2*r+1}], v18, v16")
    e("s_nop 1")
    for r in range(4):
        e(f"s_xor_b64 s[{sMASK+2*r}:{sMASK+2*r+1}], s[{sMASK+2*r}:{sMASK+2*r+1}], s[{sDIR}:{sDIR+1}]")
    e("v_mov_b32 v18, 0xffff")
    e("v_mov_b32 v19, 0xffff0000")
    e(f"v_cndmask_b32 v20, 0, v18, s[{sMASK}:{sMASK+1}]")
    e(f"v_cndmask_b32 v21, 0, v19, s[{sMASK+2}:{sMASK+3}]")
    e(f"v_or_b32 v{vM01}, v20, v21")
    e(f"v_cndmask_b32 v20, 0, v18, s[{sMASK+4}:{sMASK+5}]")
    e(f"v_cndmask_b32 v21, 0, v19, s[{sMASK+6}:{sMASK+7}]")
    e(f"v_or_b32 v{vM23}, v20, v21")
    e(f"s_mov_b32 s{sC}, 0x{f2u(math.log2(math.e)/math.sqrt(192.0)):08x}")
    e(f"v_mov_b32 v{vDN}, {FLAG}")
    e(f"s_sub_u32 s{sN}, s{sW}, 1")
    e(f"s_mul_i32 s{sT0}, s{sN}, s{sSTR}")
    e(f"s_add_u32 s{sQ}, s{sQ}, s{sT0}")
    e(f"s_lshl_b32 s{sSTR}, s{sSTR}, 2")
    e(f"s_mov_b32 s{sM}, 0")
    e("s_waitcnt lgkmcnt(0)")
    e("s_barrier")
    g.lab("L_step")
    for x in range(3):
        e(f"s_add_u32 s{sT0}, s{sN}, {x}")
        e(f"s_and_b32 s{sT0}, s{sT0}, 7")
        e(f"s_mul_i32 s{sB0+x}, s{sT0}, {SLOT}")
    for x in range(3):
        e(f"v_add_u32 v{vAd+2*x}, s{sB0+x}, v{vA}")
        e(f"v_add_u32 v{vTd+2*x}, s{sB0+x}, v{vT}")
        e(f"v_xor_b32 v{vAd+2*x+1}, 64, v{vAd+2*x}")
        e(f"v_xor_b32 v{vTd+2*x+1}, 64, v{vTd+2*x}")
    e(f"v_add_u32 v{vLd}, s{sB2}, v{vL}")
    e(f"s_lshl_b32 s{sNEED}, s{sN}, 1")
    def poll(name):
        g.lab(name)
        e(f"ds_read_b32 v{vTa}, v{vDN}")
        e("s_waitcnt lgkmcnt(0)")
        e(f"v_readfirstlane_b32 s{sT0}, v{vTa}")
        e(f"s_cmp_gt_u32 s{sT0}, s{sNEED}")
        e(f"s_cbranch_scc1 {name}_ok")
        if sleep: e(f"s_sleep {sleep}")
        e(f"s_branch {name}")
        g.lab(name + "_ok")
    poll("L_pa")
    def rd128(dst, x, off):
        for s in range(6):
            e(f"ds_read_b128 v[{dst+4*s}:{dst+4*s+3}], v{vAd+2*x+(s&1)} offset:{off + (s>>1)*128}")
    def qk(x):
        d = vS + 4*x
        kb = vK + 24*x
        for s in range(6):
            cc = "0" if s == 0 else f"v[{d}:{d+3}]"
            e(f"v_mfma_f32_16x16x32_bf16 v[{d}:{d+3}], v[{kb+4*s}:{kb+4*s+3}], v[{vQ+4*s}:{vQ+4*s+3}], {cc}")
    def rdv(x, b):
        u, ee = b >> 1, b & 1
        r = vVom + 4*b + 2*x if x < 2 else vQ + 2*b
        e(f"ds_read_b64_tr_b16 v[{r}:{r+1}], v{vTd+2*x+(u&1)} offset:{2*TILE + (u>>1)*128 + 8*ee}")
    rd128(vQ, 2, 0)
    rd128(vK, 0, TILE)
    e("s_waitcnt lgkmcnt(3)")
    rd128(vK+24, 1, TILE)
    rd128(vK+48, 2, TILE)
    e("s_waitcnt lgkmcnt(12)")
    qk(0)
    e("s_waitcnt lgkmcnt(6)")
    qk(1)
    e("s_waitcnt lgkmcnt(0)")
    qk(2)
    for b in range(12):
        rdv(0, b)
        rdv(1, b)
    e(f"s_cmp_lg_u32 s{sHS}, 0")
    e(f"s_cbranch_scc1 L_nohs")
    e(f"s_cmp_lt_u32 s{sN}, 14")
    e(f"s_cbranch_scc1 L_nohs")
    for r in range(4):
        e(f"v_mov_b32 v{vS+8+r}, 0xff800000")
    e(f"s_cmp_lt_u32 s{sN}, 15")
    e(f"s_cbranch_scc1 L_nohs")
    for r in range(4):
        e(f"v_mov_b32 v{vS+4+r}, 0xff800000")
    g.lab("L_nohs")
    for r in range(4):
        e(f"v_cndmask_b32 v{vS+r}, v{vS+r}, v{vS+8+r}, s[{sMASK+2*r}:{sMASK+2*r+1}]")
    x = [vS+k for k in range(8)]
    e(f"v_max3_f32 v{vTa}, v{x[4]}, v{x[5]}, v{x[6]}")
    e(f"v_max3_f32 v{vTb}, v{x[0]}, v{x[1]}, v{x[7]}")
    e(f"v_max3_f32 v{vTa}, v{vTa}, v{x[2]}, v{x[3]}")
    e(f"v_max_f32 v{vTa}, v{vTa}, v{vTb}")
    e(f"v_mov_b32 v{vTb}, v{vTa}")
    e("s_nop 1")
    e(f"v_permlane16_swap_b32 v{vTa}, v{vTb}")
    e(f"v_max_f32 v{vTa}, v{vTa}, v{vTb}")
    e(f"v_mov_b32 v{vTb}, v{vTa}")
    e("s_nop 1")
    e(f"v_permlane32_swap_b32 v{vTa}, v{vTb}")
    e(f"v_max_f32 v{vTa}, v{vTa}, v{vTb}")
    e(f"v_mul_f32 v{vTa}, s{sC}, v{vTa}")
    for k in range(8):
        e(f"v_fma_f32 v{vX+k}, v{x[k]}, s{sC}, -v{vTa}")
    for k in range(8):
        e(f"v_exp_f32 v{vX+k}, v{vX+k}")
    e(f"v_add_f32 v{vTa}, v{vX}, v{vX+1}")
    e(f"v_add_f32 v{vTb}, v{vX+2}, v{vX+3}")
    e(f"v_add_f32 v{vTa}, v{vTa}, v{vX+4}")
    e(f"v_add_f32 v{vTb}, v{vTb}, v{vX+5}")
    e(f"v_add_f32 v{vTa}, v{vTa}, v{vX+6}")
    e(f"v_add_f32 v{vTb}, v{vTb}, v{vX+7}")
    e(f"v_add_f32 v{vTa}, v{vTa}, v{vTb}")
    e(f"v_mov_b32 v{vTb}, v{vTa}")
    e("s_nop 1")
    e(f"v_permlane16_swap_b32 v{vTa}, v{vTb}")
    e(f"v_add_f32 v{vTa}, v{vTa}, v{vTb}")
    e(f"v_mov_b32 v{vTb}, v{vTa}")
    e("s_nop 1")
    e(f"v_permlane32_swap_b32 v{vTa}, v{vTb}")
    e(f"v_add_f32 v{vTa}, v{vTa}, v{vTb}")
    e(f"v_rcp_f32 v{vTa}, v{vTa}")
    e(f"s_add_u32 s{sNEED}, s{sNEED}, 1")
    for k in range(8):
        e(f"v_mul_f32 v{vX+k}, v{vX+k}, v{vTa}")
    e(f"v_cvt_pk_bf16_f32 v{vP}, v{vX}, v{vX+1}")
    e(f"v_cvt_pk_bf16_f32 v{vP+1}, v{vX+2}, v{vX+3}")
    e(f"v_cvt_pk_bf16_f32 v{vP+2}, v{vX+4}, v{vX+5}")
    e(f"v_cvt_pk_bf16_f32 v{vP+3}, v{vX+6}, v{vX+7}")
    e(f"v_and_b32 v{vP+4}, v{vP}, v{vM01}")
    e(f"v_and_b32 v{vP+5}, v{vP+1}, v{vM23}")
    e(f"v_xor_b32 v{vP}, v{vP}, v{vP+4}")
    e(f"v_xor_b32 v{vP+1}, v{vP+1}, v{vP+5}")
    poll("L_pb")
    for b in range(12):
        rdv(2, b)
    for b in range(12):
        r = vVom + 4*b
        e(f"v_mfma_f32_16x16x32_bf16 v[{vO+4*b}:{vO+4*b+3}], v[{r}:{r+3}], v[{vP}:{vP+3}], 0")
    e("s_waitcnt lgkmcnt(0)")
    for b in range(12):
        r = vQ + 2*b
        e(f"v_mfma_f32_16x16x16_bf16 v[{vO+4*b}:{vO+4*b+3}], v[{r}:{r+1}], v[{vP+4}:{vP+5}], v[{vO+4*b}:{vO+4*b+3}]")
    vPK = vK + 48
    e(f"s_add_u32 s{sM}, s{sM}, 1")
    for b in range(12):
        e(f"v_cvt_pk_bf16_f32 v{vPK+2*b}, v{vO+4*b}, v{vO+4*b+1}")
        e(f"v_cvt_pk_bf16_f32 v{vPK+2*b+1}, v{vO+4*b+2}, v{vO+4*b+3}")
        if b & 1:
            u = b >> 1
            e(f"ds_write_b128 v{vAd+4+(u&1)}, v[{vPK+4*u}:{vPK+4*u+3}] offset:{(u>>1)*128}")
    e(f"v_mov_b32 v{vTa}, s{sM}")
    def hold(k, j):
        return f"a[{24*k+4*j}:{24*k+4*j+3}]" if k < 3 else f"v[{vK+4*j}:{vK+4*j+3}]"
    def store(k, so):
        for j in range(6):
            off = f" offset:{(j%3)*1024}" if j % 3 else ""
            if not nostore: e(f"buffer_store_dwordx4 {hold(k,j)}, v{vG+j}, s[24:27], s{so} offen{off} {st}")
    for k in range(4):
        if k < 3:
            e(f"s_cmp_lg_u32 s{sM}, {k+1}")
            e(f"s_cbranch_scc1 L_rb{k+1}")
        for j in range(6):
            e(f"ds_read_b128 {hold(k,j)}, v{vLd} offset:{j*1024}")
        if k < early:
            e("s_waitcnt lgkmcnt(0)")
            store(k, sQ)
            e(f"s_add_u32 s{sQ}, s{sQ}, s{sSTR}")
        if k < 3:
            e("s_branch L_rbdone")
            g.lab(f"L_rb{k+1}")
    g.lab("L_rbdone")
    e(f"ds_write_b32 v{vF}, v{vTa}")
    if stamp:
        for k in range(4):
            e(f"s_cmp_eq_u32 s{sM}, {k+1}")
            e(f"s_cbranch_scc0 L_st{k}")
            stp(4+k)
            g.lab(f"L_st{k}")
    e(f"s_add_u32 s{sN}, s{sN}, 4")
    e(f"s_cmp_lt_u32 s{sM}, 4")
    e("s_cbranch_scc1 L_step")
    for k in range(early, 4):
        if k == 3: e("s_waitcnt lgkmcnt(0)")
        store(k, sQ)
        if k < 3: e(f"s_add_u32 s{sQ}, s{sQ}, s{sSTR}")
    stp(3)
    g.lab("L_fin")
    if stamp:
        e("s_waitcnt vmcnt(0)")
        e("s_memrealtime s[66:67]")
        e("s_waitcnt lgkmcnt(0)")
        e("v_mov_b32 v16, s64")
        e("v_mov_b32 v17, s66")
        e(f"s_mul_i32 s{sT0}, s2, 5")
        e(f"s_add_u32 s{sT0}, s{sT0}, s{sW}")
        e(f"s_lshl_b32 s{sT0}, s{sT0}, 3")
        e(f"v_mov_b32 v18, s{sT0}")
        e("v_cmp_eq_u32 vcc, 0, v0")
        e("s_and_saveexec_b64 s[62:63], vcc")
        e("global_store_dwordx2 v18, v[16:17], s[60:61]")
        for k in range(8):
            e(f"v_mov_b32 v{20+k}, s{72+2*k}")
        e("v_lshlrev_b32 v18, 2, v18")
        e("v_add_u32 v18, 65536, v18")
        e("global_store_dwordx4 v18, v[20:23], s[60:61]")
        e("global_store_dwordx4 v18, v[24:27], s[60:61] offset:16")
    if spin:
        e("s_waitcnt vmcnt(0)")
        g.lab("L_spin")
        e("s_sleep 2")
        e("s_memrealtime s[66:67]")
        e("s_waitcnt lgkmcnt(0)")
        e("s_sub_u32 s66, s66, s70")
        e(f"s_cmp_lt_u32 s66, {spin}")
        e("s_cbranch_scc1 L_spin")
    g.lab("L_end")
    e("s_endpgm")
    acc = (NV + 3)//4*4
    ftr = f""".section .rodata,"a"
.p2align 6
.amdhsa_kernel {KNAME}
  .amdhsa_next_free_vgpr {acc+NA}
  .amdhsa_next_free_sgpr {90 if (stamp or spin) else 60}
  .amdhsa_accum_offset {acc}
  .amdhsa_group_segment_fixed_size 0
  .amdhsa_kernarg_size 48
  .amdhsa_user_sgpr_count 2
  .amdhsa_user_sgpr_kernarg_segment_ptr 1
  .amdhsa_system_sgpr_workgroup_id_x 1
  .amdhsa_float_denorm_mode_32 3
.end_amdhsa_kernel
"""
    return "\n".join(top + g.L) + "\n" + ftr

if __name__ == "__main__":
    import argparse
    ap = argparse.ArgumentParser()
    ap.add_argument("out")
    ap.add_argument("--ld", default="")
    ap.add_argument("--ldq", default=None)
    ap.add_argument("--st", default="")
    ap.add_argument("--W", type=int, default=36)
    ap.add_argument("--stamp", action="store_true")
    ap.add_argument("--direct", action="store_true")
    ap.add_argument("--noalt", action="store_true")
    ap.add_argument("--noxcd", action="store_true")
    ap.add_argument("--spin", type=int, default=0)
    ap.add_argument("--nostore", action="store_true")
    ap.add_argument("--early", type=int, default=0)
    a = ap.parse_args()
    open(a.out, "w").write(gen(ld=a.ld, ldq=a.ldq, st=a.st, W=a.W, stamp=a.stamp, direct=a.direct, alt=not a.noalt, xcd=not a.noxcd, spin=a.spin, nostore=a.nostore, early=a.early))
```

```python
import sys, struct, math

KNAME = "standalone__sliding_local_fixed_window__prompt_kernel"
NB = 25165824
TILE = 6144
QBASE = 18*TILE
FLAG = 26*TILE
LDS_BYTES = FLAG + 5*256

def f2u(x):
    return struct.unpack("<I", struct.pack("<f", x))[0]

SRD = {"Q": 12, "K": 16, "V": 20, "O": 24}
sW = 28; sHS = 29; sC = 30; sSTR = 31
sMASK = 32
sK = 40; sQ = 41; sHB = 42; sP = 43; sPc = 44; sM = 45
sT0, sT1, sT2, sT3 = 46, 47, 48, 49
sDIR = 50
sN = 52; sSL = 53; sNEED = 54; sI = 55

vG = 1
vL, vF = 7, 8
vM01, vM23 = 9, 10
vA0, vA1 = 11, 12
vQ0, vQ1 = 13, 14
vT0, vT1 = 15, 16
vTa, vTb = 17, 18
vDN = 19
vP = 20
vZ = 26
vO = 32
vS = vO
vX = vO + 12
vQ = 80
vK = 104
vVom = vK
NV = 176
NA = 78

class Gen:
    def __init__(self):
        self.L = []
    def e(self, s): self.L.append("  " + s)
    def lab(self, s): self.L.append(s + ":")
    def c(self, s): self.L.append("  ; " + s)

def gen(ld="nt", st="nt", W=36, stamp=False, spin=0, sleep=1, nostore=False, wb=51, spinat=-1):
    g = Gen(); e = g.e
    def stp(k):
        if spin and spinat == k:
            e("s_memrealtime s[70:71]")
        if stamp:
            e(f"s_memrealtime s[{72+2*k}:{73+2*k}]")
    hdr = open("standalone__sliding_local_fixed_window__prompt.s.ref").read().split("\n")
    top = []
    for l in hdr:
        if l.startswith("; @launch"):
            break
        top.append(l)
    top.append(f"; @launch grid=(256,1,1) block=(320,1,1) lds={LDS_BYTES}")
    top += ['.amdgcn_target "amdgcn-amd-amdhsa--gfx950"', ".text", f".globl {KNAME}", ".p2align 8", f".type {KNAME},@function", f"{KNAME}:"]

    if spin:
        e("s_memrealtime s[70:71]")
    if stamp:
        e("s_memrealtime s[64:65]")
        e("s_load_dwordx2 s[60:61], s[0:1], 40")
    e("s_load_dwordx2 s[16:17], s[0:1], 8")
    e("s_load_dwordx2 s[12:13], s[0:1], 0")
    e("s_load_dwordx2 s[20:21], s[0:1], 16")
    e("s_load_dwordx2 s[24:25], s[0:1], 24")
    e("s_cmp_ge_u32 s2, 256")
    e("s_cbranch_scc1 L_end")
    z = vZ
    e(f"v_lshrrev_b32 v{z}, 6, v0")
    e(f"v_lshlrev_b32 v{vF}, 2, v0")
    e(f"v_readfirstlane_b32 s{sW}, v{z}")
    e(f"v_mov_b32 v{z+1}, 0")
    e(f"v_add_u32 v{vF}, {FLAG}, v{vF}")
    e("v_and_b32 v0, 63, v0")
    e(f"ds_write_b32 v{vF}, v{z+1}")
    e(f"v_lshrrev_b32 v{z+2}, 3, v0")
    e(f"v_lshlrev_b32 v{vL}, 4, v0")
    for j in range(3):
        e(f"v_add_u32 v{z+3}, {8*j}, v{z+2}")
        e(f"v_mul_u32_u24 v{z+3}, 11, v{z+3}")
        e(f"v_lshrrev_b32 v{z+3}, 5, v{z+3}")
        e(f"v_lshlrev_b32 v{z+3}, 4, v{z+3}")
        e(f"v_xor_b32 v{vG+j}, v{z+3}, v{vL}")
        e(f"v_add_u32 v{vG+3+j}, 3072, v{vG+j}")
    for n in "QKVO":
        e(f"s_mov_b32 s{SRD[n]+2}, {NB}")
        e(f"s_mov_b32 s{SRD[n]+3}, 0x20000")
    e(f"s_and_b32 s{sT0}, s2, 7")
    e(f"s_lshl_b32 s{sT0}, s{sT0}, 5")
    e(f"s_lshr_b32 s{sT1}, s2, 3")
    e(f"s_add_u32 s{sT0}, s{sT0}, s{sT1}")
    e(f"s_and_b32 s{sHS}, s{sT0}, 7")
    e(f"s_mul_i32 s{sT1}, s{sT0}, {16*TILE}")
    e(f"s_lshr_b32 s{sHB}, s{sT0}, 3")
    e(f"s_mul_i32 s{sHB}, s{sHB}, 786432")
    e(f"s_bitcmp0_b32 s{sT0}, 0")
    e(f"s_cselect_b64 s[{sDIR}:{sDIR+1}], -1, 0")
    e(f"s_cselect_b32 s{sSTR}, -1, 1")
    e(f"s_cselect_b32 s{sQ}, 15, 0")
    e(f"s_cselect_b32 s{sK}, 15, -2")
    e(f"s_mul_i32 s{sSTR}, s{sSTR}, {TILE}")
    e(f"s_mul_i32 s{sQ}, s{sQ}, {TILE}")
    e(f"s_mul_i32 s{sK}, s{sK}, {TILE}")
    e(f"s_add_u32 s{sQ}, s{sQ}, s{sT1}")
    e(f"s_add_u32 s{sK}, s{sK}, s{sT1}")
    e(f"s_cmp_lg_u32 s{sW}, 0")
    e("s_cbranch_scc1 L_consumer")

    g.c("loader wave")
    w = W // 3
    assert W % 3 == 0 and W <= 36
    sg = w & 1
    lag = (w - sg) // 2
    def grp(name, so, hf):
        srd = SRD[name]
        if hf == 0: e(f"s_mov_b32 m0, s{sSL}")
        else: e(f"s_add_u32 m0, s{sSL}, 3072")
        e("s_nop 0")
        for j in range(3):
            off = f" offset:{j*1024}" if j else ""
            e(f"buffer_load_dwordx4 v{vG+hf*3+j}, s[{srd}:{srd+3}], s{so} offen{off} {ld} lds")
    e("s_setprio 3")
    e(f"s_mov_b32 s{sP}, s{sK}")
    e(f"s_mov_b32 s{sSL}, 0")
    e("s_waitcnt lgkmcnt(0)")
    stp(0)
    g.lab("L_ldk")
    e(f"s_max_i32 s{sPc}, s{sP}, s{sHB}")
    for hf in range(2):
        e(f"s_waitcnt vmcnt({W})")
        grp("K", sPc, hf)
    e(f"s_add_u32 s{sP}, s{sP}, s{sSTR}")
    e(f"s_add_u32 s{sSL}, s{sSL}, {TILE}")
    e(f"s_cmp_lt_u32 s{sSL}, {QBASE}")
    e("s_cbranch_scc1 L_ldk")
    e("s_barrier")
    def phase(name, lbl, i0, i1):
        g.lab(lbl)
        e(f"s_add_i32 s{sT0}, s{sI}, {lag-26}")
        e(f"s_and_b32 s{sT1}, s{sT0}, 3")
        e(f"s_lshl_b32 s{sT1}, s{sT1}, 8")
        e(f"v_add_u32 v{vDN}, s{sT1}, v{vF}")
        e(f"s_ashr_i32 s{sT0}, s{sT0}, 2")
        if name == "V":
            e(f"s_cmp_gt_i32 s{sT0}, 3")
            e(f"s_cselect_b32 s{sT0}, -1, s{sT0}")
            e(f"s_max_i32 s{sPc}, s{sP}, s{sHB}")
        e(f"v_mov_b32 v{z}, s{sI}")
        e(f"s_waitcnt vmcnt({W})")
        if sg == 0: e(f"ds_write_b32 v{vF}, v{z}")
        g.lab(lbl + "_p")
        e(f"ds_read_b32 v{z+1}, v{vDN} offset:256")
        e("s_waitcnt lgkmcnt(0)")
        e(f"v_readfirstlane_b32 s{sT1}, v{z+1}")
        e(f"s_cmp_gt_i32 s{sT1}, s{sT0}")
        e(f"s_cbranch_scc0 {lbl}_p")
        so = sPc if name == "V" else sP
        grp(name, so, 0)
        e(f"s_waitcnt vmcnt({W})")
        if sg == 1: e(f"ds_write_b32 v{vF}, v{z}")
        grp(name, so, 1)
        e(f"s_add_u32 s{sP}, s{sP}, s{sSTR}")
        e(f"s_add_u32 s{sSL}, s{sSL}, {TILE}")
        if name == "Q":
            e(f"s_cmp_eq_u32 s{sSL}, {FLAG}")
            e(f"s_cselect_b32 s{sSL}, {QBASE}, s{sSL}")
        e(f"s_add_u32 s{sI}, s{sI}, 1")
        e(f"s_cmp_lt_u32 s{sI}, {i1-lag}")
        e(f"s_cbranch_scc1 {lbl}")
    e(f"s_mov_b32 s{sI}, {18-lag}")
    e(f"s_mov_b32 s{sP}, s{sQ}")
    phase("Q", "L_ldq", 18, 34)
    e(f"s_mov_b32 s{sP}, s{sK}")
    e(f"s_mov_b32 s{sSL}, 0")
    phase("V", "L_ldv", 34, 52)
    stp(1)
    for t in range(52 - lag, 53):
        e(f"v_mov_b32 v{z}, {t}")
        e(f"s_waitcnt vmcnt({6*(52-t)})")
        e(f"ds_write_b32 v{vF}, v{z}")
    stp(2)
    e("s_branch L_fin")

    g.lab("L_consumer")
    e(f"s_sub_u32 s{sN}, s{sW}, 1")
    e(f"s_mul_i32 s{sT2}, s{sN}, {TILE}")
    e(f"v_and_b32 v{z}, 15, v0")
    e(f"v_lshrrev_b32 v{z+1}, 4, v0")
    e(f"v_and_b32 v{z+2}, 7, v0")
    e(f"v_xor_b32 v{z+2}, v{z+2}, v{z+1}")
    e(f"v_lshlrev_b32 v{z+2}, 4, v{z+2}")
    e(f"v_mul_u32_u24 v{z+3}, 384, v{z}")
    e(f"v_add3_u32 v{vA0}, v{z+2}, v{z+3}, s{sT2}")
    e(f"v_xor_b32 v{vA1}, 64, v{vA0}")
    e(f"v_add_u32 v{vQ0}, {QBASE}, v{vA0}")
    e(f"v_add_u32 v{vQ1}, {QBASE}, v{vA1}")
    e(f"v_lshrrev_b32 v{z+2}, 2, v0")
    e(f"v_and_b32 v{z+3}, 3, v0")
    e(f"v_and_b32 v{z+4}, 7, v{z+2}")
    e(f"v_xor_b32 v{z+3}, v{z+3}, v{z+4}")
    e(f"v_lshlrev_b32 v{z+3}, 4, v{z+3}")
    e(f"v_mul_u32_u24 v{z+2}, 384, v{z+2}")
    e(f"v_add3_u32 v{vT0}, v{z+2}, v{z+3}, s{sT2}")
    e(f"v_xor_b32 v{vT1}, 64, v{vT0}")
    e(f"s_add_u32 s{sT2}, s{sT2}, {QBASE + 4*TILE}")
    e(f"v_add_u32 v{vL}, s{sT2}, v{vL}")
    e(f"v_lshlrev_b32 v{z+1}, 2, v{z+1}")
    for r in range(4):
        e(f"v_add_u32 v{z+2}, {r}, v{z+1}")
        e(f"v_cmp_le_u32 s[{sMASK+2*r}:{sMASK+2*r+1}], v{z+2}, v{z}")
    e("s_nop 1")
    for r in range(4):
        e(f"s_xor_b64 s[{sMASK+2*r}:{sMASK+2*r+1}], s[{sMASK+2*r}:{sMASK+2*r+1}], s[{sDIR}:{sDIR+1}]")
    e(f"v_mov_b32 v{z+2}, 0xffff")
    e(f"v_mov_b32 v{z+3}, 0xffff0000")
    e(f"v_cndmask_b32 v{z+4}, 0, v{z+2}, s[{sMASK}:{sMASK+1}]")
    e(f"v_cndmask_b32 v{z+5}, 0, v{z+3}, s[{sMASK+2}:{sMASK+3}]")
    e(f"v_or_b32 v{vM01}, v{z+4}, v{z+5}")
    e(f"v_cndmask_b32 v{z+4}, 0, v{z+2}, s[{sMASK+4}:{sMASK+5}]")
    e(f"v_cndmask_b32 v{z+5}, 0, v{z+3}, s[{sMASK+6}:{sMASK+7}]")
    e(f"v_or_b32 v{vM23}, v{z+4}, v{z+5}")
    e(f"s_mov_b32 s{sC}, 0x{f2u(math.log2(math.e)/math.sqrt(192.0)):08x}")
    e(f"v_mov_b32 v{vDN}, {FLAG}")
    e(f"s_mul_i32 s{sT0}, s{sN}, s{sSTR}")
    e(f"s_add_u32 s{sQ}, s{sQ}, s{sT0}")
    e(f"s_lshl_b32 s{sSTR}, s{sSTR}, 2")
    e(f"s_mov_b32 s{sM}, 0")
    e(f"s_mov_b32 s{sT3}, {4*TILE}")
    e("s_waitcnt lgkmcnt(0)")
    e("s_barrier")
    def poll(name, need):
        g.lab(name)
        e(f"ds_read_b32 v{vTa}, v{vDN}")
        e("s_waitcnt lgkmcnt(0)")
        e(f"v_readfirstlane_b32 s{sT0}, v{vTa}")
        e(f"s_cmp_gt_u32 s{sT0}, {need}")
        if sleep:
            e(f"s_cbranch_scc1 {name}_ok")
            e(f"s_sleep {sleep}")
            e(f"s_branch {name}")
            g.lab(name + "_ok")
        else:
            e(f"s_cbranch_scc0 {name}")
    poll("L_pk", 17)
    g.lab("L_stepa")
    for x in range(3):
        for s in range(6):
            d = vK + 24*x + 4*s
            e(f"ds_read_b128 v[{d}:{d+3}], v{vA0+(s&1)} offset:{x*TILE + (s>>1)*128}")
    e(f"s_add_u32 s{sNEED}, s{sN}, 18")
    e(f"s_add_u32 s{sM}, s{sM}, 1")
    e(f"v_mov_b32 v{vTb}, s{sM}")
    poll("L_pq", f"s{sNEED}")
    for s in range(6):
        e(f"ds_read_b128 v[{vQ+4*s}:{vQ+4*s+3}], v{vQ0+(s&1)} offset:{(s>>1)*128}")
    e(f"ds_write_b32 v{vF}, v{vTb}")
    for s in range(6):
        e(f"s_waitcnt lgkmcnt({6-s})")
        for x in range(3):
            d = vS + 4*x
            kb = vK + 24*x
            cc = "0" if s == 0 else f"v[{d}:{d+3}]"
            e(f"v_mfma_f32_16x16x32_bf16 v[{d}:{d+3}], v[{kb+4*s}:{kb+4*s+3}], v[{vQ+4*s}:{vQ+4*s+3}], {cc}")
    e(f"v_add_u32 v{vA0}, {4*TILE}, v{vA0}")
    e(f"v_add_u32 v{vA1}, {4*TILE}, v{vA1}")
    e(f"v_add_u32 v{vQ0}, s{sT3}, v{vQ0}")
    e(f"v_add_u32 v{vQ1}, s{sT3}, v{vQ1}")
    e(f"s_sub_u32 s{sT3}, 0, s{sT3}")
    e(f"s_cmp_lg_u32 s{sHS}, 0")
    e(f"s_cselect_b32 s{sT0}, 0, s{sN}")
    e(f"s_cmp_lt_u32 s{sT0}, 14")
    e(f"s_cbranch_scc1 L_nohs")
    for r in range(4):
        e(f"v_mov_b32 v{vS+8+r}, 0xff800000")
    e(f"s_cmp_lt_u32 s{sN}, 15")
    e(f"s_cbranch_scc1 L_nohs")
    for r in range(4):
        e(f"v_mov_b32 v{vS+4+r}, 0xff800000")
    g.lab("L_nohs")
    for r in range(4):
        e(f"v_cndmask_b32 v{vS+r}, v{vS+r}, v{vS+8+r}, s[{sMASK+2*r}:{sMASK+2*r+1}]")
    x = [vS+k for k in range(8)]
    e(f"v_max3_f32 v{vTa}, v{x[4]}, v{x[5]}, v{x[6]}")
    e(f"v_max3_f32 v{vTb}, v{x[0]}, v{x[1]}, v{x[7]}")
    e(f"v_max3_f32 v{vTa}, v{vTa}, v{x[2]}, v{x[3]}")
    e(f"v_max_f32 v{vTa}, v{vTa}, v{vTb}")
    e(f"v_mov_b32 v{vTb}, v{vTa}")
    e("s_nop 1")
    e(f"v_permlane16_swap_b32 v{vTa}, v{vTb}")
    e(f"v_max_f32 v{vTa}, v{vTa}, v{vTb}")
    e(f"v_mov_b32 v{vTb}, v{vTa}")
    e("s_nop 1")
    e(f"v_permlane32_swap_b32 v{vTa}, v{vTb}")
    e(f"v_max_f32 v{vTa}, v{vTa}, v{vTb}")
    e(f"v_mul_f32 v{vTa}, s{sC}, v{vTa}")
    for k in range(8):
        e(f"v_fma_f32 v{vX+k}, v{x[k]}, s{sC}, -v{vTa}")
    for k in range(8):
        e(f"v_exp_f32 v{vX+k}, v{vX+k}")
    e(f"v_add_f32 v{vTa}, v{vX}, v{vX+1}")
    e(f"v_add_f32 v{vTb}, v{vX+2}, v{vX+3}")
    e(f"v_add_f32 v{vTa}, v{vTa}, v{vX+4}")
    e(f"v_add_f32 v{vTb}, v{vTb}, v{vX+5}")
    e(f"v_add_f32 v{vTa}, v{vTa}, v{vX+6}")
    e(f"v_add_f32 v{vTb}, v{vTb}, v{vX+7}")
    e(f"v_add_f32 v{vTa}, v{vTa}, v{vTb}")
    e(f"v_mov_b32 v{vTb}, v{vTa}")
    e("s_nop 1")
    e(f"v_permlane16_swap_b32 v{vTa}, v{vTb}")
    e(f"v_add_f32 v{vTa}, v{vTa}, v{vTb}")
    e(f"v_mov_b32 v{vTb}, v{vTa}")
    e("s_nop 1")
    e(f"v_permlane32_swap_b32 v{vTa}, v{vTb}")
    e(f"v_add_f32 v{vTa}, v{vTa}, v{vTb}")
    e(f"v_rcp_f32 v{vTa}, v{vTa}")
    e(f"s_add_u32 s{sN}, s{sN}, 4")
    for k in range(8):
        e(f"v_mul_f32 v{vX+k}, v{vX+k}, v{vTa}")
    e(f"v_cvt_pk_bf16_f32 v{vP}, v{vX}, v{vX+1}")
    e(f"v_cvt_pk_bf16_f32 v{vP+1}, v{vX+2}, v{vX+3}")
    e(f"v_cvt_pk_bf16_f32 v{vP+2}, v{vX+4}, v{vX+5}")
    e(f"v_cvt_pk_bf16_f32 v{vP+3}, v{vX+6}, v{vX+7}")
    for k in range(4):
        if k < 3:
            e(f"s_cmp_lg_u32 s{sM}, {k+1}")
            e(f"s_cbranch_scc1 L_sp{k+1}")
        for j in range(4):
            e(f"v_accvgpr_write_b32 a{24*k+j}, v{vP+j}")
        if k < 3:
            e("s_branch L_stepa")
            g.lab(f"L_sp{k+1}")
    stp(4)
    e(f"v_add_u32 v{vQ0}, {4*TILE}, v{vQ0}")
    e(f"v_add_u32 v{vQ1}, {4*TILE}, v{vQ1}")
    e(f"s_add_u32 s{sNEED}, s{sN}, {35-16}")
    e(f"s_mov_b32 s{sM}, 0")
    for j in range(4):
        e(f"v_accvgpr_read_b32 v{vP+j}, a{j}")
    g.lab("L_stepb")
    e(f"v_and_b32 v{vP+4}, v{vP}, v{vM01}")
    e(f"v_and_b32 v{vP+5}, v{vP+1}, v{vM23}")
    e(f"v_xor_b32 v{vP}, v{vP}, v{vP+4}")
    e(f"v_xor_b32 v{vP+1}, v{vP+1}, v{vP+5}")
    def rdv(x, b):
        u, ee = b >> 1, b & 1
        r = vVom + 4*b + 2*x if x < 2 else vQ + 2*b
        e(f"ds_read_b64_tr_b16 v[{r}:{r+1}], v{vT0+(u&1)} offset:{x*TILE + (u>>1)*128 + 8*ee}")
    poll("L_pm", f"s{sNEED}")
    for b in range(6):
        rdv(0, b); rdv(1, b)
    for b in range(12):
        if b + 6 < 12:
            e("s_waitcnt lgkmcnt(10)")
        else:
            e(f"s_waitcnt lgkmcnt({2*(11-b)})")
        r = vVom + 4*b
        e(f"v_mfma_f32_16x16x32_bf16 v[{vO+4*b}:{vO+4*b+3}], v[{r}:{r+3}], v[{vP}:{vP+3}], 0")
        if b + 6 < 12:
            rdv(0, b+6); rdv(1, b+6)
    e(f"s_add_u32 s{sM}, s{sM}, 1")
    e(f"s_add_u32 s{sNEED}, s{sNEED}, 1")
    poll("L_pb", f"s{sNEED}")
    for b in range(12):
        rdv(2, b)
    vPK = vK + 48
    def cvt(b):
        e(f"v_cvt_pk_bf16_f32 v{vPK+2*b}, v{vO+4*b}, v{vO+4*b+1}")
        e(f"v_cvt_pk_bf16_f32 v{vPK+2*b+1}, v{vO+4*b+2}, v{vO+4*b+3}")
    def owrite(u):
        e(f"ds_write_b128 v{vQ0+(u&1)}, v[{vPK+4*u}:{vPK+4*u+3}] offset:{(u>>1)*128}")
    LAG = 4
    for b in range(12):
        e(f"s_waitcnt lgkmcnt({11-b})")
        r = vQ + 2*b
        e(f"v_mfma_f32_16x16x16_bf16 v[{vO+4*b}:{vO+4*b+3}], v[{r}:{r+1}], v[{vP+4}:{vP+5}], v[{vO+4*b}:{vO+4*b+3}]")
        if b >= LAG: cvt(b - LAG)
    for u in range(4): owrite(u)
    cvt(8); cvt(9)
    owrite(4)
    cvt(10); cvt(11)
    owrite(5)
    e(f"v_add_u32 v{vT0}, {4*TILE}, v{vT0}")
    e(f"v_add_u32 v{vT1}, {4*TILE}, v{vT1}")
    e(f"s_add_u32 s{sNEED}, s{sNEED}, 3")
    def hold(k, j):
        return f"a[{24*k+4*j}:{24*k+4*j+3}]" if k < 3 else f"v[{vK+4*j}:{vK+4*j+3}]"
    def store(k, so):
        for j in range(6):
            off = f" offset:{(j%3)*1024}" if j % 3 else ""
            if not nostore: e(f"buffer_store_dwordx4 {hold(k,j)}, v{vG+j}, s[24:27], s{so} offen{off} {st}")
    for k in range(4):
        if k < 3:
            e(f"s_cmp_lg_u32 s{sM}, {k+1}")
            e(f"s_cbranch_scc1 L_rb{k+1}")
        for j in range(6):
            e(f"ds_read_b128 {hold(k,j)}, v{vL} offset:{j*1024}")
        if k < 3:
            for j in range(4):
                e(f"v_accvgpr_read_b32 v{vP+j}, a{24*(k+1)+j}")
            if k == 0: stp(5)
            e("s_branch L_stepb")
            g.lab(f"L_rb{k+1}")
    stp(7)
    if wb:
        poll("L_pw", wb)
    for k in range(4):
        if k == 3: e("s_waitcnt lgkmcnt(0)")
        store(k, sQ)
        if k < 3: e(f"s_add_u32 s{sQ}, s{sQ}, s{sSTR}")
    stp(3)
    g.lab("L_fin")
    if stamp:
        e("s_waitcnt vmcnt(0)")
        e("s_memrealtime s[66:67]")
        e("s_waitcnt lgkmcnt(0)")
        e("v_mov_b32 v16, s64")
        e("v_mov_b32 v17, s66")
        e(f"s_mul_i32 s{sT0}, s2, 5")
        e(f"s_add_u32 s{sT0}, s{sT0}, s{sW}")
        e(f"s_lshl_b32 s{sT0}, s{sT0}, 3")
        e(f"v_mov_b32 v18, s{sT0}")
        e("v_cmp_eq_u32 vcc, 0, v0")
        e("s_and_saveexec_b64 s[62:63], vcc")
        e("global_store_dwordx2 v18, v[16:17], s[60:61]")
        for k in range(8):
            e(f"v_mov_b32 v{20+k}, s{72+2*k}")
        e("v_lshlrev_b32 v18, 2, v18")
        e("v_add_u32 v18, 65536, v18")
        e("global_store_dwordx4 v18, v[20:23], s[60:61]")
        e("global_store_dwordx4 v18, v[24:27], s[60:61] offset:16")
    if spin:
        e("s_waitcnt vmcnt(0)")
        g.lab("L_spin")
        e("s_sleep 2")
        e("s_memrealtime s[66:67]")
        e("s_waitcnt lgkmcnt(0)")
        e("s_sub_u32 s66, s66, s70")
        e(f"s_cmp_lt_u32 s66, {spin}")
        e("s_cbranch_scc1 L_spin")
    g.lab("L_end")
    e("s_endpgm")
    acc = (NV + 3)//4*4
    ftr = f""".section .rodata,"a"
.p2align 6
.amdhsa_kernel {KNAME}
  .amdhsa_next_free_vgpr {acc+NA}
  .amdhsa_next_free_sgpr {90 if (stamp or spin) else 60}
  .amdhsa_accum_offset {acc}
  .amdhsa_group_segment_fixed_size 0
  .amdhsa_kernarg_size 48
  .amdhsa_user_sgpr_count 2
  .amdhsa_user_sgpr_kernarg_segment_ptr 1
  .amdhsa_system_sgpr_workgroup_id_x 1
  .amdhsa_float_denorm_mode_32 3
.end_amdhsa_kernel
"""
    return "\n".join(top + g.L) + "\n" + ftr

if __name__ == "__main__":
    import argparse
    ap = argparse.ArgumentParser()
    ap.add_argument("out")
    ap.add_argument("--ld", default="nt")
    ap.add_argument("--st", default="nt")
    ap.add_argument("--W", type=int, default=36)
    ap.add_argument("--stamp", action="store_true")
    ap.add_argument("--spin", type=int, default=0)
    ap.add_argument("--spinat", type=int, default=-1)
    ap.add_argument("--sleep", type=int, default=1)
    ap.add_argument("--nostore", action="store_true")
    ap.add_argument("--wb", type=int, default=51)
    a = ap.parse_args()
    open(a.out, "w").write(gen(ld=a.ld, st=a.st, W=a.W, stamp=a.stamp, spin=a.spin, spinat=a.spinat, sleep=a.sleep, nostore=a.nostore, wb=a.wb))
```

```python
import sys, struct, math

KNAME = "standalone__sliding_local_fixed_window__prompt_kernel"
NB = 25165824
TILE = 6144
QBASE = 18*TILE
FLAG = 26*TILE
LDS_BYTES = FLAG + 5*256

def f2u(x):
    return struct.unpack("<I", struct.pack("<f", x))[0]

SRD = {"Q": 12, "K": 16, "V": 20, "O": 24}
sW = 28; sHS = 29; sC = 30
sMASK = 32
sTOP = 40; sHB = 42; sP = 43; sPc = 44; sM = 45
sT0, sT1, sT2, sT3 = 46, 47, 48, 49
sCH = 50
sN = 52; sSL = 53; sNEED = 54; sI = 55

vG = 1
vL, vF = 7, 8
vM01, vM23 = 9, 10
vA0, vA1 = 11, 12
vQ0, vQ1 = 13, 14
vT0, vT1 = 15, 16
vTa, vTb = 17, 18
vDN = 19
vP = 20
vZ = 26
vO = 32
vS = vO
vX = vO + 12
vQ = 80
vK = 104
vVom = vK
NV = 176
NA = 76


DOC = """; ---------------------------------------------------------------------------------------------------------
;
; ---------------------------------------------------------------------------------------------------------"""

class Gen:
    def __init__(self):
        self.L = []
    def e(self, s): self.L.append("  " + s)
    def lab(self, s): self.L.append(s + ":")
    def c(self, s): self.L.append("  ; " + s)

def gen(ld="nt", st="sc1", W=24, stamp=False, sleep=1, nostore=False, wb=51, nob=False, ldo="", ldok=None, W0=0, nown=2, ex=0, ff=0, bar=False, rev=False, orc=0, pf=0, ffx=0, wbl=0, nnt=0):
    g = Gen(); e = g.e; c = g.c
    ldok = ld if ldok is None else ldok
    def stp(k):
        if stamp:
            e(f"s_memrealtime s[{72+2*k}:{73+2*k}]")
    hdr = open("standalone__sliding_local_fixed_window__prompt.s.ref").read().split("\n")
    top = []
    for l in hdr:
        if l.startswith("; @launch"):
            break
        top.append(l)
    top.append(f"; @launch grid=(256,1,1) block=(320,1,1) lds={LDS_BYTES}")
    top.append(DOC)
    top += ['.amdgcn_target "amdgcn-amd-amdhsa--gfx950"', ".text", f".globl {KNAME}", ".p2align 8", f".type {KNAME},@function", f"{KNAME}:"]

    if stamp:
        e("s_memrealtime s[64:65]")
        e("s_load_dwordx2 s[60:61], s[0:1], 40")
    e("s_load_dwordx2 s[16:17], s[0:1], 8")
    e("s_load_dwordx2 s[12:13], s[0:1], 0")
    e("s_load_dwordx2 s[20:21], s[0:1], 16")
    e("s_load_dwordx2 s[24:25], s[0:1], 24")
    z = vZ
    e(f"v_lshrrev_b32 v{z}, 6, v0")
    e(f"v_lshlrev_b32 v{vF}, 2, v0")
    e("s_cmp_ge_u32 s2, 256")
    e(f"v_readfirstlane_b32 s{sW}, v{z}")
    e("s_cbranch_scc1 L_end")
    e("v_and_b32 v0, 63, v0")
    e(f"v_lshrrev_b32 v{z+2}, 3, v0")
    e(f"v_lshlrev_b32 v{vL}, 4, v0")
    e(f"v_mul_u32_u24 v{z+2}, 11, v{z+2}")
    c("global offset of the 16 bytes lane L moves in piece j of a half tile: (L*16) ^ (row<<4), row = (8j + L/8) / 3")
    for j in range(3):
        if j: e(f"v_add_u32 v{z+2}, 88, v{z+2}")
        e(f"v_lshrrev_b32 v{z+3}, 1, v{z+2}")
        e(f"v_and_b32 v{z+3}, 0x70, v{z+3}")
        e(f"v_xor_b32 v{vG+j}, v{z+3}, v{vL}")
        e(f"v_add_u32 v{vG+3+j}, 3072, v{vG+j}")
    e(f"s_and_b32 s{sT0}, s2, 7")
    e(f"s_lshl_b32 s{sT0}, s{sT0}, 5")
    e(f"s_lshr_b32 s{sT1}, s2, 3")
    e(f"s_add_u32 s{sCH}, s{sT0}, s{sT1}")
    e(f"s_mul_i32 s{sTOP}, s{sCH}, {16*TILE}")
    e(f"s_add_u32 s{sTOP}, s{sTOP}, {15*TILE}")
    e(f"s_mov_b32 s18, {NB}")
    e(f"s_mov_b32 s19, 0x20000")
    e(f"s_cmp_lg_u32 s{sW}, 0")
    e("s_cbranch_scc1 L_consumer")

    c("loader wave")
    assert W % 3 == 0 and W <= 30
    sg = (W // 3) & 1
    lag = W // 6
    def grp(name, so, hf, pol):
        srd = SRD[name]
        if hf == 0: e(f"s_mov_b32 m0, s{sSL}")
        else: e(f"s_add_u32 m0, s{sSL}, 3072")
        e("s_nop 0")
        for j in range(3):
            off = f" offset:{j*1024}" if j else ""
            e(f"buffer_load_dwordx4 v{vG+hf*3+j}, s[{srd}:{srd+3}], s{so} offen{off} {pol} lds")
    def adv():
        e(f"s_sub_u32 s{sP}, s{sP}, {TILE}")
        e(f"s_add_u32 s{sSL}, s{sSL}, {TILE}")
    e(f"s_mov_b32 s{sP}, s{sTOP}")
    e(f"s_mov_b32 s{sSL}, 0")
    e("s_setprio 3")
    e("s_waitcnt lgkmcnt(0)")
    stp(0)
    if ldok != ld:
        g.lab("L_ldk0")
        for hf in range(2): grp("K", sP, hf, ldok)
        adv()
        e(f"s_cmp_lt_u32 s{sSL}, {2*TILE}")
        e("s_cbranch_scc1 L_ldk0")
    c("K: own tiles")
    g.lab("L_ldk")
    for hf in range(2):
        e(f"s_waitcnt vmcnt({W})")
        grp("K", sP, hf, ld)
    adv()
    e(f"s_cmp_lt_u32 s{sSL}, {16*TILE}")
    e("s_cbranch_scc1 L_ldk")
    e(f"s_lshr_b32 s{sHB}, s{sCH}, 3")
    e(f"s_mul_i32 s{sHB}, s{sHB}, 786432")
    def halo(name, lbl):
        g.lab(lbl)
        e(f"s_max_i32 s{sPc}, s{sP}, s{sHB}")
        for hf in range(2): grp(name, sPc, hf, ld)
        adv()
        e(f"s_cmp_lt_u32 s{sSL}, {18*TILE}")
        e(f"s_cbranch_scc1 {lbl}")
    c("K: halo tiles (clamped to the head's first tile where the head starts; masked later)")
    halo("K", "L_ldkh")
    for n in "QV":
        e(f"s_mov_b32 s{SRD[n]+2}, {NB}")
        e(f"s_mov_b32 s{SRD[n]+3}, 0x20000")
    e(f"v_mov_b32 v{z}, 0")
    e(f"v_add_u32 v{vF}, {FLAG}, v{vF}")
    e(f"s_mov_b32 s{sP}, s{sTOP}")
    e(f"ds_write_b32 v{vF}, v{z}")
    c("first Q tiles: the 12 halo loads (L2 hits) sit inside the window and are not counted against it")
    g.lab("L_ldq0")
    for hf in range(2):
        e(f"s_waitcnt vmcnt({W+12})")
        grp("Q", sP, hf, ld)
    adv()
    e(f"s_cmp_lt_u32 s{sSL}, {QBASE + (lag+sg)*TILE}")
    e("s_cbranch_scc1 L_ldq0")
    e("s_waitcnt lgkmcnt(0)")
    e("s_barrier")
    def phase(name, lbl, i1, pol, check):
        g.lab(lbl)
        if check:
            e(f"s_add_i32 s{sT0}, s{sI}, {lag-26}")
            e(f"s_and_b32 s{sT1}, s{sT0}, 3")
            e(f"s_lshl_b32 s{sT1}, s{sT1}, 8")
            e(f"v_add_u32 v{vDN}, s{sT1}, v{vF}")
            e(f"s_ashr_i32 s{sT0}, s{sT0}, 2")
            g.lab(lbl + "_p")
            e(f"ds_read_b32 v{z+1}, v{vDN} offset:256")
            e("s_waitcnt lgkmcnt(0)")
            e(f"v_readfirstlane_b32 s{sT1}, v{z+1}")
            e(f"s_cmp_gt_i32 s{sT1}, s{sT0}")
            e(f"s_cbranch_scc0 {lbl}_p")
        e(f"v_mov_b32 v{z}, s{sI}")
        e(f"s_waitcnt vmcnt({W})")
        if sg == 0: e(f"ds_write_b32 v{vF}, v{z}")
        grp(name, sP, 0, pol)
        e(f"s_waitcnt vmcnt({W})")
        if sg == 1: e(f"ds_write_b32 v{vF}, v{z}")
        grp(name, sP, 1, pol)
        adv()
        if name == "Q":
            e(f"s_cmp_eq_u32 s{sSL}, {FLAG}")
            e(f"s_cselect_b32 s{sSL}, {QBASE}, s{sSL}")
        e(f"s_add_u32 s{sI}, s{sI}, 1")
        e(f"s_cmp_lt_u32 s{sI}, {i1-lag}")
        e(f"s_cbranch_scc1 {lbl}")
    c("Q / V: a slot is refilled only after the compute wave that read it last has posted its done flag")
    e(f"s_mov_b32 s{sI}, {18+sg}")
    phase("Q", "L_ldq", 34, ld, True)
    e(f"s_mov_b32 s{sP}, s{sTOP}")
    e(f"s_mov_b32 s{sSL}, 0")
    if ldo != ld:
        phase("V", "L_ldv0", 34 + nown, ldo, True)
    phase("V", "L_ldv1", 42, ld, True)
    phase("V", "L_ldv2", 50 - ex, ld, False)
    halo("V", "L_ldvh")
    stp(1)
    for t in range(50 - ex - lag, 53):
        e(f"v_mov_b32 v{z}, {t}")
        e(f"s_waitcnt vmcnt({6*(52-t)})")
        e(f"ds_write_b32 v{vF}, v{z}")
    stp(2)
    e("s_waitcnt lgkmcnt(0)")
    e("s_branch L_fin" if stamp else "s_endpgm")

    g.lab("L_consumer")
    if pf:
        c("pull the whole kernel text into L2 (scalar loads, one per 128-byte line) while memory is still quiet")
        e("s_getpc_b64 s[4:5]")
        g.lab("L_pc")
        e(f"s_sub_u32 s4, s4, L_pc-{KNAME}")
        e("s_subb_u32 s5, s5, 0")
        for i in range(2, pf):
            e(f"s_load_dword s6, s[4:5], {128*i}")
    e(f"s_mov_b32 s26, {NB}")
    e(f"s_mov_b32 s27, 0x20000")
    e(f"v_mov_b32 v{z}, 0")
    e(f"v_add_u32 v{vF}, {FLAG}, v{vF}")
    e(f"s_sub_u32 s{sN}, s{sW}, 1")
    e(f"ds_write_b32 v{vF}, v{z}")
    e(f"s_and_b32 s{sHS}, s{sCH}, 7")
    e(f"s_mul_i32 s{sT2}, s{sN}, {TILE}")
    e(f"s_sub_u32 s{sTOP}, s{sTOP}, s{sT2}")
    e(f"v_and_b32 v{z}, 15, v0")
    e(f"v_lshrrev_b32 v{z+1}, 4, v0")
    e(f"v_and_b32 v{z+2}, 7, v0")
    e(f"v_xor_b32 v{z+2}, v{z+2}, v{z+1}")
    e(f"v_lshlrev_b32 v{z+2}, 4, v{z+2}")
    e(f"v_mul_u32_u24 v{z+3}, 384, v{z}")
    e(f"v_add3_u32 v{vA0}, v{z+2}, v{z+3}, s{sT2}")
    e(f"v_xor_b32 v{vA1}, 64, v{vA0}")
    e(f"v_add_u32 v{vQ0}, {QBASE}, v{vA0}")
    e(f"v_add_u32 v{vQ1}, {QBASE}, v{vA1}")
    e(f"v_lshrrev_b32 v{z+2}, 2, v0")
    e(f"v_and_b32 v{z+3}, 3, v0")
    e(f"v_and_b32 v{z+4}, 7, v{z+2}")
    e(f"v_xor_b32 v{z+3}, v{z+3}, v{z+4}")
    e(f"v_lshlrev_b32 v{z+3}, 4, v{z+3}")
    e(f"v_mul_u32_u24 v{z+2}, 384, v{z+2}")
    e(f"v_add3_u32 v{vT0}, v{z+2}, v{z+3}, s{sT2}")
    e(f"v_xor_b32 v{vT1}, 64, v{vT0}")
    e(f"s_add_u32 s{sT2}, s{sT2}, {QBASE + 4*TILE}")
    e(f"v_add_u32 v{vL}, s{sT2}, v{vL}")
    e(f"v_lshlrev_b32 v{z+1}, 2, v{z+1}")
    c("mask r: key 4g+r of the far tile (two tiles back) is inside the window iff 4g+r > query i")
    for r in range(4):
        e(f"v_add_u32 v{z+2}, {r}, v{z+1}")
        e(f"v_cmp_gt_u32 s[{sMASK+2*r}:{sMASK+2*r+1}], v{z+2}, v{z}")
    e(f"v_mov_b32 v{z+2}, 0xffff")
    e(f"v_mov_b32 v{z+3}, 0xffff0000")
    e(f"v_cndmask_b32 v{z+4}, 0, v{z+2}, s[{sMASK}:{sMASK+1}]")
    e(f"v_cndmask_b32 v{z+5}, 0, v{z+3}, s[{sMASK+2}:{sMASK+3}]")
    e(f"v_or_b32 v{vM01}, v{z+4}, v{z+5}")
    e(f"v_cndmask_b32 v{z+4}, 0, v{z+2}, s[{sMASK+4}:{sMASK+5}]")
    e(f"v_cndmask_b32 v{z+5}, 0, v{z+3}, s[{sMASK+6}:{sMASK+7}]")
    e(f"v_or_b32 v{vM23}, v{z+4}, v{z+5}")
    e(f"s_mov_b32 s{sC}, 0x{f2u(math.log2(math.e)/math.sqrt(192.0)):08x}")
    e(f"v_mov_b32 v{vDN}, {FLAG}")
    e(f"s_mov_b32 s{sM}, 0")
    e(f"s_mov_b32 s{sT3}, {4*TILE}")
    if ff and ffx:
        e(f"s_getreg_b32 s{sT0}, hwreg(HW_REG_XCC_ID)")
        e(f"s_and_b32 s{sT0}, s{sT0}, 7")
        e(f"s_bitcmp1_b32 {ffx}, s{sT0}")
        e(f"s_cselect_b32 s{sPc}, {wb}, 60")
    elif ff: e(f"s_mov_b32 s{sPc}, {wb}")
    e("s_waitcnt lgkmcnt(0)")
    if orc:
        e("s_memrealtime s[56:57]")
        e("s_waitcnt lgkmcnt(0)")
        e(f"s_mov_b32 s{sPc}, 0")
    e("s_barrier")
    def orc_check(tag):
        e(f"s_cmp_lg_u32 s{sPc}, 1")
        e(f"s_cbranch_scc1 L_oc{tag}")
        e("s_memrealtime s[58:59]")
        e("s_waitcnt lgkmcnt(0)")
        e("s_sub_u32 s58, s58, s56")
        e(f"s_cmp_lt_u32 s58, {orc}")
        e(f"s_cbranch_scc1 L_oc{tag}")
        e("s_call_b64 s[4:5], L_flush")
        g.lab(f"L_oc{tag}")
    def poll(name, need, cached=False):
        if cached:
            e(f"s_cmp_gt_u32 s{sI}, {need}")
            e(f"s_cbranch_scc1 {name}_ok")
        g.lab(name)
        if orc and name in ("L_pm", "L_pb"): orc_check(name)
        e(f"ds_read_b32 v{vTa}, v{vDN}")
        e("s_waitcnt lgkmcnt(0)")
        e(f"v_readfirstlane_b32 s{sI}, v{vTa}")
        e(f"s_cmp_gt_u32 s{sI}, {need}")
        if sleep:
            e(f"s_cbranch_scc1 {name}_ok")
            e(f"s_sleep {sleep}")
            e(f"s_branch {name}")
        else:
            e(f"s_cbranch_scc0 {name}")
        g.lab(name + "_ok")
    c("phase A")
    poll("L_pk", 17)
    g.lab("L_stepa")
    for x in range(3):
        for s in range(6):
            d = vK + 24*x + 4*s
            e(f"ds_read_b128 v[{d}:{d+3}], v{vA0+(s&1)} offset:{x*TILE + (s>>1)*128}")
    e(f"s_add_u32 s{sNEED}, s{sN}, 18")
    e(f"s_add_u32 s{sM}, s{sM}, 1")
    e(f"v_mov_b32 v{vTb}, s{sM}")
    poll("L_pq", f"s{sNEED}")
    for s in range(6):
        e(f"ds_read_b128 v[{vQ+4*s}:{vQ+4*s+3}], v{vQ0+(s&1)} offset:{(s>>1)*128}")
    e(f"ds_write_b32 v{vF}, v{vTb}")
    for s in range(6):
        e(f"s_waitcnt lgkmcnt({6-s})")
        for x in range(3):
            d = vS + 4*x
            kb = vK + 24*x
            cc = "0" if s == 0 else f"v[{d}:{d+3}]"
            e(f"v_mfma_f32_16x16x32_bf16 v[{d}:{d+3}], v[{kb+4*s}:{kb+4*s+3}], v[{vQ+4*s}:{vQ+4*s+3}], {cc}")
    e(f"v_add_u32 v{vA0}, {4*TILE}, v{vA0}")
    e(f"v_add_u32 v{vA1}, {4*TILE}, v{vA1}")
    e(f"v_add_u32 v{vQ0}, s{sT3}, v{vQ0}")
    e(f"v_add_u32 v{vQ1}, s{sT3}, v{vQ1}")
    e(f"s_sub_u32 s{sT3}, 0, s{sT3}")
    e(f"s_cmp_lg_u32 s{sHS}, 0")
    e(f"s_cselect_b32 s{sT0}, 0, s{sN}")
    e(f"s_cmp_lt_u32 s{sT0}, 14")
    e(f"s_cbranch_scc1 L_nohs")
    c("first two query tiles of a head: the key tiles before the head do not exist")
    for r in range(4):
        e(f"v_mov_b32 v{vS+8+r}, 0xff800000")
    e(f"s_cmp_lt_u32 s{sN}, 15")
    e(f"s_cbranch_scc1 L_nohs")
    for r in range(4):
        e(f"v_mov_b32 v{vS+4+r}, 0xff800000")
    g.lab("L_nohs")
    for r in range(4):
        e(f"v_cndmask_b32 v{vS+r}, v{vS+r}, v{vS+8+r}, s[{sMASK+2*r}:{sMASK+2*r+1}]")
    x = [vS+k for k in range(8)]
    e(f"v_max3_f32 v{vTa}, v{x[4]}, v{x[5]}, v{x[6]}")
    e(f"v_max3_f32 v{vTb}, v{x[0]}, v{x[1]}, v{x[7]}")
    e(f"v_max3_f32 v{vTa}, v{vTa}, v{x[2]}, v{x[3]}")
    e(f"v_max_f32 v{vTa}, v{vTa}, v{vTb}")
    e(f"v_mov_b32 v{vTb}, v{vTa}")
    e("s_nop 1")
    e(f"v_permlane16_swap_b32 v{vTa}, v{vTb}")
    e(f"v_max_f32 v{vTa}, v{vTa}, v{vTb}")
    e(f"v_mov_b32 v{vTb}, v{vTa}")
    e("s_nop 1")
    e(f"v_permlane32_swap_b32 v{vTa}, v{vTb}")
    e(f"v_max_f32 v{vTa}, v{vTa}, v{vTb}")
    for k in range(8):
        e(f"v_sub_f32 v{vX+k}, v{x[k]}, v{vTa}")
    for k in range(8):
        e(f"v_mul_f32 v{vX+k}, s{sC}, v{vX+k}")
    for k in range(8):
        e(f"v_exp_f32 v{vX+k}, v{vX+k}")
    e(f"v_add_f32 v{vTa}, v{vX}, v{vX+1}")
    e(f"v_add_f32 v{vTb}, v{vX+2}, v{vX+3}")
    e(f"v_add_f32 v{vTa}, v{vTa}, v{vX+4}")
    e(f"v_add_f32 v{vTb}, v{vTb}, v{vX+5}")
    e(f"v_add_f32 v{vTa}, v{vTa}, v{vX+6}")
    e(f"v_add_f32 v{vTb}, v{vTb}, v{vX+7}")
    e(f"v_add_f32 v{vTa}, v{vTa}, v{vTb}")
    e(f"v_mov_b32 v{vTb}, v{vTa}")
    e("s_nop 1")
    e(f"v_permlane16_swap_b32 v{vTa}, v{vTb}")
    e(f"v_add_f32 v{vTa}, v{vTa}, v{vTb}")
    e(f"v_mov_b32 v{vTb}, v{vTa}")
    e("s_nop 1")
    e(f"v_permlane32_swap_b32 v{vTa}, v{vTb}")
    e(f"v_add_f32 v{vTa}, v{vTa}, v{vTb}")
    e(f"v_rcp_f32 v{vTa}, v{vTa}")
    e(f"s_add_u32 s{sN}, s{sN}, 4")
    for k in range(8):
        e(f"v_mul_f32 v{vX+k}, v{vX+k}, v{vTa}")
    e(f"v_cvt_pk_bf16_f32 v{vP}, v{vX}, v{vX+1}")
    e(f"v_cvt_pk_bf16_f32 v{vP+1}, v{vX+2}, v{vX+3}")
    e(f"v_cvt_pk_bf16_f32 v{vP+2}, v{vX+4}, v{vX+5}")
    e(f"v_cvt_pk_bf16_f32 v{vP+3}, v{vX+6}, v{vX+7}")
    for k in range(4):
        if k < 3:
            e(f"s_cmp_lg_u32 s{sM}, {k+1}")
            e(f"s_cbranch_scc1 L_sp{k+1}")
        for j in range(4):
            e(f"v_accvgpr_write_b32 a{24*k+j}, v{vP+j}")
        if k < 3:
            e("s_branch L_stepa")
            g.lab(f"L_sp{k+1}")
    stp(4)
    if nob: e("s_endpgm")
    c("phase B")
    e(f"v_add_u32 v{vQ0}, {4*TILE}, v{vQ0}")
    e(f"v_add_u32 v{vQ1}, {4*TILE}, v{vQ1}")
    e(f"s_add_u32 s{sNEED}, s{sN}, {35-16}")
    e(f"s_mov_b32 s{sM}, 0")
    for j in range(4):
        e(f"v_accvgpr_read_b32 v{vP+j}, a{j}")
    g.lab("L_stepb")
    e(f"v_and_b32 v{vP+4}, v{vP}, v{vM01}")
    e(f"v_and_b32 v{vP+5}, v{vP+1}, v{vM23}")
    e(f"v_xor_b32 v{vP}, v{vP}, v{vP+4}")
    e(f"v_xor_b32 v{vP+1}, v{vP+1}, v{vP+5}")
    def rdv(x, b):
        u, ee = b >> 1, b & 1
        r = vVom + 4*b + 2*x if x < 2 else vQ + 2*b
        e(f"ds_read_b64_tr_b16 v[{r}:{r+1}], v{vT0+(u&1)} offset:{x*TILE + (u>>1)*128 + 8*ee}")
    if orc:
        e("s_waitcnt lgkmcnt(0)")
        e(f"s_cmp_eq_u32 s{sM}, 3")
        e(f"s_cselect_b32 s{sPc}, 1, 0")
    poll("L_pm", f"s{sNEED}", not orc)
    e("s_waitcnt lgkmcnt(0)")
    if ff & 1:
        e(f"s_cmp_eq_u32 s{sM}, 3")
        e(f"s_cselect_b32 s{sT0}, s{sI}, 0")
        e(f"s_cmp_gt_u32 s{sT0}, s{sPc}")
        e("s_cbranch_scc0 L_noff1")
        e(f"s_call_b64 s[4:5], L_flush")
        g.lab("L_noff1")
    for b in range(6):
        rdv(0, b); rdv(1, b)
    for b in range(12):
        if b + 6 < 12:
            e("s_waitcnt lgkmcnt(10)")
        else:
            e(f"s_waitcnt lgkmcnt({2*(11-b)})")
        r = vVom + 4*b
        e(f"v_mfma_f32_16x16x32_bf16 v[{vO+4*b}:{vO+4*b+3}], v[{r}:{r+3}], v[{vP}:{vP+3}], 0")
        if b + 6 < 12:
            rdv(0, b+6); rdv(1, b+6)
    e(f"s_add_u32 s{sM}, s{sM}, 1")
    e(f"s_add_u32 s{sNEED}, s{sNEED}, 1")
    poll("L_pb", f"s{sNEED}", not orc)
    if ff & 2:
        e(f"s_cmp_eq_u32 s{sM}, 4")
        e(f"s_cselect_b32 s{sT0}, s{sI}, 0")
        e(f"s_cmp_gt_u32 s{sT0}, s{sPc}")
        e("s_cbranch_scc0 L_noff2")
        e(f"s_call_b64 s[4:5], L_flush")
        g.lab("L_noff2")
    for b in range(12):
        rdv(2, b)
    vPK = vK + 48
    def cvt(b):
        e(f"v_cvt_pk_bf16_f32 v{vPK+2*b}, v{vO+4*b}, v{vO+4*b+1}")
        e(f"v_cvt_pk_bf16_f32 v{vPK+2*b+1}, v{vO+4*b+2}, v{vO+4*b+3}")
    def owrite(u):
        e(f"ds_write_b128 v{vQ0+(u&1)}, v[{vPK+4*u}:{vPK+4*u+3}] offset:{(u>>1)*128}")
    LAG = 4
    for b in range(12):
        e(f"s_waitcnt lgkmcnt({11-b})")
        r = vQ + 2*b
        e(f"v_mfma_f32_16x16x16_bf16 v[{vO+4*b}:{vO+4*b+3}], v[{r}:{r+1}], v[{vP+4}:{vP+5}], v[{vO+4*b}:{vO+4*b+3}]")
        if b >= LAG: cvt(b - LAG)
    for u in range(4): owrite(u)
    cvt(8); cvt(9)
    owrite(4)
    cvt(10); cvt(11)
    owrite(5)
    e(f"v_add_u32 v{vT0}, {4*TILE}, v{vT0}")
    e(f"v_add_u32 v{vT1}, {4*TILE}, v{vT1}")
    e(f"s_add_u32 s{sNEED}, s{sNEED}, 3")
    def hold(k, j):
        return f"a[{24*k+4*j}:{24*k+4*j+3}]" if k < 3 else f"v[{vK+4*j}:{vK+4*j+3}]"
    def store(k, so):
        for j in range(6):
            off = f" offset:{(j%3)*1024}" if j % 3 else ""
            pol = "nt" if 6*k+j < nnt else st
            if not nostore: e(f"buffer_store_dwordx4 {hold(k,j)}, v{vG+j}, s[24:27], s{so} offen{off} {pol}")
    for k in range(4):
        if k < 3:
            e(f"s_cmp_lg_u32 s{sM}, {k+1}")
            e(f"s_cbranch_scc1 L_rb{k+1}")
        for j in range(6):
            e(f"ds_read_b128 {hold(k,j)}, v{vL} offset:{j*1024}")
        if k < 3:
            for j in range(4):
                e(f"v_accvgpr_read_b32 v{vP+j}, a{24*(k+1)+j}")
            e("s_branch L_stepb")
            g.lab(f"L_rb{k+1}")
    stp(7)
    c("stores")
    if orc:
        g.lab("L_ow")
        orc_check("w")
        e(f"s_cmp_eq_u32 s{sPc}, 1")
        e("s_cbranch_scc1 L_ow")
        e("s_waitcnt lgkmcnt(0)")
        store(3, sTOP)
        e("s_endpgm")
        g.lab("L_flush")
        for k in range(3):
            store(k, sTOP)
            e(f"s_sub_u32 s{sTOP}, s{sTOP}, {4*TILE}")
        e(f"s_mov_b32 s{sPc}, -1")
        e(f"s_setpc_b64 s[4:5]")
    elif ff:
        e(f"s_cmp_eq_u32 s{sPc}, -1")
        e("s_cbranch_scc1 L_last")
        poll("L_pw", wb, True)
        e(f"s_call_b64 s[4:5], L_flush")
        g.lab("L_last")
        e("s_waitcnt lgkmcnt(0)")
        store(3, sTOP)
        stp(3)
        e("s_branch L_fin" if stamp else "s_endpgm")
        g.lab("L_flush")
        for k in range(3):
            store(k, sTOP)
            e(f"s_sub_u32 s{sTOP}, s{sTOP}, {4*TILE}")
        e(f"s_mov_b32 s{sPc}, -1")
        e(f"s_setpc_b64 s[4:5]")
    else:
        if bar:
            e("s_barrier")
        elif wb:
            poll("L_pw", wb, True)
        for k in range(4):
            if k == 3: e("s_waitcnt lgkmcnt(0)")
            store(k, sTOP)
            if k < 3: e(f"s_sub_u32 s{sTOP}, s{sTOP}, {4*TILE}")
        if wbl:
            e(f"s_cmp_lg_u32 s{sW}, 4")
            e("s_cbranch_scc1 L_end")
            if wbl >= 2:
                e(f"s_and_b32 s{sT0}, s{sCH}, {wbl-1}")
                e(f"s_cmp_lg_u32 s{sT0}, 0")
                e("s_cbranch_scc1 L_end")
            e("s_waitcnt vmcnt(0)")
            e("buffer_wbl2 sc1")
        stp(3)
    if stamp:
        g.lab("L_fin")
        e("s_waitcnt vmcnt(0)")
        e("s_memrealtime s[66:67]")
        e("s_waitcnt lgkmcnt(0)")
        e("v_mov_b32 v16, s64")
        e("v_mov_b32 v17, s66")
        e(f"s_mul_i32 s{sT0}, s2, 5")
        e(f"s_add_u32 s{sT0}, s{sT0}, s{sW}")
        e(f"s_lshl_b32 s{sT0}, s{sT0}, 3")
        e(f"v_mov_b32 v18, s{sT0}")
        e("v_cmp_eq_u32 vcc, 0, v0")
        e("s_and_saveexec_b64 s[62:63], vcc")
        e("global_store_dwordx2 v18, v[16:17], s[60:61]")
        for k in range(8):
            e(f"v_mov_b32 v{20+k}, s{72+2*k}")
        e("v_lshlrev_b32 v18, 2, v18")
        e("v_add_u32 v18, 65536, v18")
        e("global_store_dwordx4 v18, v[20:23], s[60:61]")
        e("global_store_dwordx4 v18, v[24:27], s[60:61] offset:16")
    g.lab("L_end")
    e("s_endpgm")
    acc = (NV + 3)//4*4
    ftr = f""".section .rodata,"a"
.p2align 6
.amdhsa_kernel {KNAME}
  .amdhsa_next_free_vgpr {acc+NA}
  .amdhsa_next_free_sgpr {90 if stamp else 60}
  .amdhsa_accum_offset {acc}
  .amdhsa_group_segment_fixed_size 0
  .amdhsa_kernarg_size 48
  .amdhsa_user_sgpr_count 2
  .amdhsa_user_sgpr_kernarg_segment_ptr 1
  .amdhsa_system_sgpr_workgroup_id_x 1
  .amdhsa_float_denorm_mode_32 3
.end_amdhsa_kernel
"""
    return "\n".join(top + g.L) + "\n" + ftr

if __name__ == "__main__":
    import argparse
    ap = argparse.ArgumentParser()
    ap.add_argument("out")
    ap.add_argument("--ld", default="nt")
    ap.add_argument("--ldo", default="")
    ap.add_argument("--ldok", default="")
    ap.add_argument("--st", default="sc1")
    ap.add_argument("--W", type=int, default=21)
    ap.add_argument("--stamp", action="store_true")
    ap.add_argument("--sleep", type=int, default=1)
    ap.add_argument("--nostore", action="store_true")
    ap.add_argument("--nob", action="store_true")
    ap.add_argument("--wb", type=int, default=51)
    ap.add_argument("--ex", type=int, default=0)
    ap.add_argument("--ff", type=int, default=0)
    ap.add_argument("--bar", action="store_true")
    ap.add_argument("--orc", type=int, default=0)
    ap.add_argument("--pf", type=int, default=0)
    ap.add_argument("--ffx", type=lambda x: int(x, 0), default=0)
    ap.add_argument("--wbl", type=int, default=0)
    ap.add_argument("--nnt", type=int, default=0)
    a = ap.parse_args()
    open(a.out, "w").write(gen(ld=a.ld, ldo=a.ldo, ldok=a.ldok, st=a.st, W=a.W, stamp=a.stamp, sleep=a.sleep, nostore=a.nostore, wb=a.wb, nob=a.nob, ex=a.ex, ff=a.ff, bar=a.bar, orc=a.orc, pf=a.pf, ffx=a.ffx, wbl=a.wbl, nnt=a.nnt))
```

```python
import sys, struct, math

KNAME = "standalone__sliding_local_fixed_window__prompt_kernel"
NB = 25165824
TILE = 6144
QBASE = 18*TILE
FLAG = 26*TILE
LDS_BYTES = FLAG + 5*256

def f2u(x):
    return struct.unpack("<I", struct.pack("<f", x))[0]

SRD = {"Q": 12, "K": 16, "V": 20, "O": 24}
sW = 28; sHS = 29; sC = 30
sMASK = 32
sTOP = 40; sHB = 42; sP = 43; sPc = 44; sM = 45
sT0, sT1, sT2, sT3 = 46, 47, 48, 49
sCH = 50
sN = 52; sSL = 53; sNEED = 54; sI = 55

vG = 1
vL, vF = 7, 8
vM01, vM23 = 9, 10
vA0, vA1 = 11, 12
vQ0, vQ1 = 13, 14
vT0, vT1 = 15, 16
vTa, vTb = 17, 18
vDN = 19
vP = 20
vZ = 26
vO = 32
vS = vO
vX = vO + 12
vQ = 80
vK = 104
vVom = vK
NV = 176
NA = 76

class Gen:
    def __init__(self):
        self.L = []
    def e(self, s): self.L.append("  " + s)
    def lab(self, s): self.L.append(s + ":")
    def c(self, s): self.L.append("  ; " + s)

def gen(ld="nt", st="sc1", W=24, stamp=False, sleep=1, nostore=False, wb=51, nob=False, ldo="", ldok=None, W0=0, nown=2, ex=0, ff=0, bar=False, rev=False, orc=0):
    g = Gen(); e = g.e; c = g.c
    ldok = ld if ldok is None else ldok
    def stp(k):
        if stamp:
            e(f"s_memrealtime s[{72+2*k}:{73+2*k}]")
    hdr = open("standalone__sliding_local_fixed_window__prompt.s.ref").read().split("\n")
    top = []
    for l in hdr:
        if l.startswith("; @launch"):
            break
        top.append(l)
    top.append(f"; @launch grid=(256,1,1) block=(320,1,1) lds={LDS_BYTES}")
    top += ['.amdgcn_target "amdgcn-amd-amdhsa--gfx950"', ".text", f".globl {KNAME}", ".p2align 8", f".type {KNAME},@function", f"{KNAME}:"]

    if stamp:
        e("s_memrealtime s[64:65]")
        e("s_load_dwordx2 s[60:61], s[0:1], 40")
    e("s_load_dwordx2 s[16:17], s[0:1], 8")
    e("s_load_dwordx2 s[12:13], s[0:1], 0")
    e("s_load_dwordx2 s[20:21], s[0:1], 16")
    e("s_load_dwordx2 s[24:25], s[0:1], 24")
    z = vZ
    e(f"v_lshrrev_b32 v{z}, 6, v0")
    e(f"v_lshlrev_b32 v{vF}, 2, v0")
    e("s_cmp_ge_u32 s2, 256")
    e(f"v_readfirstlane_b32 s{sW}, v{z}")
    e("s_cbranch_scc1 L_end")
    e("v_and_b32 v0, 63, v0")
    e(f"v_lshrrev_b32 v{z+2}, 3, v0")
    e(f"v_lshlrev_b32 v{vL}, 4, v0")
    e(f"v_mul_u32_u24 v{z+2}, 11, v{z+2}")
    c("global offset of the 16 bytes lane L moves in piece j of a half tile: (L*16) ^ (row<<4), row = (8j + L/8) / 3")
    for j in range(3):
        if j: e(f"v_add_u32 v{z+2}, 88, v{z+2}")
        e(f"v_lshrrev_b32 v{z+3}, 1, v{z+2}")
        e(f"v_and_b32 v{z+3}, 0x70, v{z+3}")
        e(f"v_xor_b32 v{vG+j}, v{z+3}, v{vL}")
        e(f"v_add_u32 v{vG+3+j}, 3072, v{vG+j}")
    e(f"s_and_b32 s{sT0}, s2, 7")
    e(f"s_lshl_b32 s{sT0}, s{sT0}, 5")
    e(f"s_lshr_b32 s{sT1}, s2, 3")
    e(f"s_add_u32 s{sCH}, s{sT0}, s{sT1}")
    e(f"s_mul_i32 s{sTOP}, s{sCH}, {16*TILE}")
    e(f"s_add_u32 s{sTOP}, s{sTOP}, {15*TILE}")
    e(f"s_mov_b32 s18, {NB}")
    e(f"s_mov_b32 s19, 0x20000")
    e(f"s_cmp_lg_u32 s{sW}, 0")
    e("s_cbranch_scc1 L_consumer")

    c("loader wave")
    assert W % 3 == 0 and W <= 30
    sg = (W // 3) & 1
    lag = W // 6
    def grp(name, so, hf, pol):
        srd = SRD[name]
        if hf == 0: e(f"s_mov_b32 m0, s{sSL}")
        else: e(f"s_add_u32 m0, s{sSL}, 3072")
        e("s_nop 0")
        for j in range(3):
            off = f" offset:{j*1024}" if j else ""
            e(f"buffer_load_dwordx4 v{vG+hf*3+j}, s[{srd}:{srd+3}], s{so} offen{off} {pol} lds")
    def adv():
        e(f"s_sub_u32 s{sP}, s{sP}, {TILE}")
        e(f"s_add_u32 s{sSL}, s{sSL}, {TILE}")
    e(f"s_mov_b32 s{sP}, s{sTOP}")
    e(f"s_mov_b32 s{sSL}, 0")
    e("s_setprio 3")
    e("s_waitcnt lgkmcnt(0)")
    stp(0)
    if ldok != ld:
        g.lab("L_ldk0")
        for hf in range(2): grp("K", sP, hf, ldok)
        adv()
        e(f"s_cmp_lt_u32 s{sSL}, {2*TILE}")
        e("s_cbranch_scc1 L_ldk0")
    g.lab("L_ldk")
    for hf in range(2):
        e(f"s_waitcnt vmcnt({W})")
        grp("K", sP, hf, ld)
    adv()
    e(f"s_cmp_lt_u32 s{sSL}, {16*TILE}")
    e("s_cbranch_scc1 L_ldk")
    e(f"s_lshr_b32 s{sHB}, s{sCH}, 3")
    e(f"s_mul_i32 s{sHB}, s{sHB}, 786432")
    def halo(name, lbl):
        g.lab(lbl)
        e(f"s_max_i32 s{sPc}, s{sP}, s{sHB}")
        for hf in range(2): grp(name, sPc, hf, ld)
        adv()
        e(f"s_cmp_lt_u32 s{sSL}, {18*TILE}")
        e(f"s_cbranch_scc1 {lbl}")
    halo("K", "L_ldkh")
    for n in "QV":
        e(f"s_mov_b32 s{SRD[n]+2}, {NB}")
        e(f"s_mov_b32 s{SRD[n]+3}, 0x20000")
    e(f"v_mov_b32 v{z}, 0")
    e(f"v_add_u32 v{vF}, {FLAG}, v{vF}")
    e(f"s_mov_b32 s{sP}, s{sTOP}")
    e(f"ds_write_b32 v{vF}, v{z}")
    c("first Q tiles: the 12 halo loads (L2 hits) sit inside the window and are not counted against it")
    g.lab("L_ldq0")
    for hf in range(2):
        e(f"s_waitcnt vmcnt({W+12})")
        grp("Q", sP, hf, ld)
    adv()
    e(f"s_cmp_lt_u32 s{sSL}, {QBASE + (lag+sg)*TILE}")
    e("s_cbranch_scc1 L_ldq0")
    e("s_waitcnt lgkmcnt(0)")
    e("s_barrier")
    def phase(name, lbl, i1, pol, check):
        g.lab(lbl)
        if check:
            e(f"s_add_i32 s{sT0}, s{sI}, {lag-26}")
            e(f"s_and_b32 s{sT1}, s{sT0}, 3")
            e(f"s_lshl_b32 s{sT1}, s{sT1}, 8")
            e(f"v_add_u32 v{vDN}, s{sT1}, v{vF}")
            e(f"s_ashr_i32 s{sT0}, s{sT0}, 2")
            g.lab(lbl + "_p")
            e(f"ds_read_b32 v{z+1}, v{vDN} offset:256")
            e("s_waitcnt lgkmcnt(0)")
            e(f"v_readfirstlane_b32 s{sT1}, v{z+1}")
            e(f"s_cmp_gt_i32 s{sT1}, s{sT0}")
            e(f"s_cbranch_scc0 {lbl}_p")
        e(f"v_mov_b32 v{z}, s{sI}")
        e(f"s_waitcnt vmcnt({W})")
        if sg == 0: e(f"ds_write_b32 v{vF}, v{z}")
        grp(name, sP, 0, pol)
        e(f"s_waitcnt vmcnt({W})")
        if sg == 1: e(f"ds_write_b32 v{vF}, v{z}")
        grp(name, sP, 1, pol)
        adv()
        if name == "Q":
            e(f"s_cmp_eq_u32 s{sSL}, {FLAG}")
            e(f"s_cselect_b32 s{sSL}, {QBASE}, s{sSL}")
        e(f"s_add_u32 s{sI}, s{sI}, 1")
        e(f"s_cmp_lt_u32 s{sI}, {i1-lag}")
        e(f"s_cbranch_scc1 {lbl}")
    e(f"s_mov_b32 s{sI}, {18+sg}")
    phase("Q", "L_ldq", 34, ld, True)
    e(f"s_mov_b32 s{sP}, s{sTOP}")
    e(f"s_mov_b32 s{sSL}, 0")
    if ldo != ld:
        phase("V", "L_ldv0", 34 + nown, ldo, True)
    phase("V", "L_ldv1", 42, ld, True)
    phase("V", "L_ldv2", 50 - ex, ld, False)
    halo("V", "L_ldvh")
    stp(1)
    for t in range(50 - ex - lag, 53):
        e(f"v_mov_b32 v{z}, {t}")
        e(f"s_waitcnt vmcnt({6*(52-t)})")
        e(f"ds_write_b32 v{vF}, v{z}")
    stp(2)
    e("s_waitcnt lgkmcnt(0)")
    e("s_branch L_fin" if stamp else "s_endpgm")

    g.lab("L_consumer")
    e(f"s_mov_b32 s26, {NB}")
    e(f"s_mov_b32 s27, 0x20000")
    e(f"v_mov_b32 v{z}, 0")
    e(f"v_add_u32 v{vF}, {FLAG}, v{vF}")
    e(f"s_sub_u32 s{sN}, s{sW}, 1")
    e(f"ds_write_b32 v{vF}, v{z}")
    e(f"s_and_b32 s{sHS}, s{sCH}, 7")
    e(f"s_mul_i32 s{sT2}, s{sN}, {TILE}")
    e(f"s_sub_u32 s{sTOP}, s{sTOP}, s{sT2}")
    e(f"v_and_b32 v{z}, 15, v0")
    e(f"v_lshrrev_b32 v{z+1}, 4, v0")
    e(f"v_and_b32 v{z+2}, 7, v0")
    e(f"v_xor_b32 v{z+2}, v{z+2}, v{z+1}")
    e(f"v_lshlrev_b32 v{z+2}, 4, v{z+2}")
    e(f"v_mul_u32_u24 v{z+3}, 384, v{z}")
    e(f"v_add3_u32 v{vA0}, v{z+2}, v{z+3}, s{sT2}")
    e(f"v_xor_b32 v{vA1}, 64, v{vA0}")
    e(f"v_add_u32 v{vQ0}, {QBASE}, v{vA0}")
    e(f"v_add_u32 v{vQ1}, {QBASE}, v{vA1}")
    e(f"v_lshrrev_b32 v{z+2}, 2, v0")
    e(f"v_and_b32 v{z+3}, 3, v0")
    e(f"v_and_b32 v{z+4}, 7, v{z+2}")
    e(f"v_xor_b32 v{z+3}, v{z+3}, v{z+4}")
    e(f"v_lshlrev_b32 v{z+3}, 4, v{z+3}")
    e(f"v_mul_u32_u24 v{z+2}, 384, v{z+2}")
    e(f"v_add3_u32 v{vT0}, v{z+2}, v{z+3}, s{sT2}")
    e(f"v_xor_b32 v{vT1}, 64, v{vT0}")
    e(f"s_add_u32 s{sT2}, s{sT2}, {QBASE + 4*TILE}")
    e(f"v_add_u32 v{vL}, s{sT2}, v{vL}")
    e(f"v_lshlrev_b32 v{z+1}, 2, v{z+1}")
    c("mask r: key 4g+r of the far tile (two tiles back) is inside the window iff 4g+r > query i")
    for r in range(4):
        e(f"v_add_u32 v{z+2}, {r}, v{z+1}")
        e(f"v_cmp_gt_u32 s[{sMASK+2*r}:{sMASK+2*r+1}], v{z+2}, v{z}")
    e(f"v_mov_b32 v{z+2}, 0xffff")
    e(f"v_mov_b32 v{z+3}, 0xffff0000")
    e(f"v_cndmask_b32 v{z+4}, 0, v{z+2}, s[{sMASK}:{sMASK+1}]")
    e(f"v_cndmask_b32 v{z+5}, 0, v{z+3}, s[{sMASK+2}:{sMASK+3}]")
    e(f"v_or_b32 v{vM01}, v{z+4}, v{z+5}")
    e(f"v_cndmask_b32 v{z+4}, 0, v{z+2}, s[{sMASK+4}:{sMASK+5}]")
    e(f"v_cndmask_b32 v{z+5}, 0, v{z+3}, s[{sMASK+6}:{sMASK+7}]")
    e(f"v_or_b32 v{vM23}, v{z+4}, v{z+5}")
    e(f"s_mov_b32 s{sC}, 0x{f2u(math.log2(math.e)/math.sqrt(192.0)):08x}")
    e(f"v_mov_b32 v{vDN}, {FLAG}")
    e(f"s_mov_b32 s{sM}, 0")
    e(f"s_mov_b32 s{sT3}, {4*TILE}")
    if ff: e(f"s_mov_b32 s{sPc}, {wb}")
    e("s_waitcnt lgkmcnt(0)")
    if orc:
        e("s_memrealtime s[56:57]")
        e("s_waitcnt lgkmcnt(0)")
        e(f"s_mov_b32 s{sPc}, 0")
    e("s_barrier")
    def orc_check(tag):
        e(f"s_cmp_lg_u32 s{sPc}, 1")
        e(f"s_cbranch_scc1 L_oc{tag}")
        e("s_memrealtime s[58:59]")
        e("s_waitcnt lgkmcnt(0)")
        e("s_sub_u32 s58, s58, s56")
        e(f"s_cmp_lt_u32 s58, {orc}")
        e(f"s_cbranch_scc1 L_oc{tag}")
        e("s_call_b64 s[4:5], L_flush")
        g.lab(f"L_oc{tag}")
    def poll(name, need, cached=False):
        if cached:
            e(f"s_cmp_gt_u32 s{sI}, {need}")
            e(f"s_cbranch_scc1 {name}_ok")
        g.lab(name)
        if orc and name in ("L_pm", "L_pb"): orc_check(name)
        e(f"ds_read_b32 v{vTa}, v{vDN}")
        e("s_waitcnt lgkmcnt(0)")
        e(f"v_readfirstlane_b32 s{sI}, v{vTa}")
        e(f"s_cmp_gt_u32 s{sI}, {need}")
        if sleep:
            e(f"s_cbranch_scc1 {name}_ok")
            e(f"s_sleep {sleep}")
            e(f"s_branch {name}")
        else:
            e(f"s_cbranch_scc0 {name}")
        g.lab(name + "_ok")
    poll("L_pk", 17)
    g.lab("L_stepa")
    for x in range(3):
        for s in range(6):
            d = vK + 24*x + 4*s
            e(f"ds_read_b128 v[{d}:{d+3}], v{vA0+(s&1)} offset:{x*TILE + (s>>1)*128}")
    e(f"s_add_u32 s{sNEED}, s{sN}, 18")
    e(f"s_add_u32 s{sM}, s{sM}, 1")
    e(f"v_mov_b32 v{vTb}, s{sM}")
    poll("L_pq", f"s{sNEED}")
    for s in range(6):
        e(f"ds_read_b128 v[{vQ+4*s}:{vQ+4*s+3}], v{vQ0+(s&1)} offset:{(s>>1)*128}")
    e(f"ds_write_b32 v{vF}, v{vTb}")
    for s in range(6):
        e(f"s_waitcnt lgkmcnt({6-s})")
        for x in range(3):
            d = vS + 4*x
            kb = vK + 24*x
            cc = "0" if s == 0 else f"v[{d}:{d+3}]"
            e(f"v_mfma_f32_16x16x32_bf16 v[{d}:{d+3}], v[{kb+4*s}:{kb+4*s+3}], v[{vQ+4*s}:{vQ+4*s+3}], {cc}")
    e(f"v_add_u32 v{vA0}, {4*TILE}, v{vA0}")
    e(f"v_add_u32 v{vA1}, {4*TILE}, v{vA1}")
    e(f"v_add_u32 v{vQ0}, s{sT3}, v{vQ0}")
    e(f"v_add_u32 v{vQ1}, s{sT3}, v{vQ1}")
    e(f"s_sub_u32 s{sT3}, 0, s{sT3}")
    e(f"s_cmp_lg_u32 s{sHS}, 0")
    e(f"s_cselect_b32 s{sT0}, 0, s{sN}")
    e(f"s_cmp_lt_u32 s{sT0}, 14")
    e(f"s_cbranch_scc1 L_nohs")
    for r in range(4):
        e(f"v_mov_b32 v{vS+8+r}, 0xff800000")
    e(f"s_cmp_lt_u32 s{sN}, 15")
    e(f"s_cbranch_scc1 L_nohs")
    for r in range(4):
        e(f"v_mov_b32 v{vS+4+r}, 0xff800000")
    g.lab("L_nohs")
    for r in range(4):
        e(f"v_cndmask_b32 v{vS+r}, v{vS+r}, v{vS+8+r}, s[{sMASK+2*r}:{sMASK+2*r+1}]")
    x = [vS+k for k in range(8)]
    e(f"v_max3_f32 v{vTa}, v{x[4]}, v{x[5]}, v{x[6]}")
    e(f"v_max3_f32 v{vTb}, v{x[0]}, v{x[1]}, v{x[7]}")
    e(f"v_max3_f32 v{vTa}, v{vTa}, v{x[2]}, v{x[3]}")
    e(f"v_max_f32 v{vTa}, v{vTa}, v{vTb}")
    e(f"v_mov_b32 v{vTb}, v{vTa}")
    e("s_nop 1")
    e(f"v_permlane16_swap_b32 v{vTa}, v{vTb}")
    e(f"v_max_f32 v{vTa}, v{vTa}, v{vTb}")
    e(f"v_mov_b32 v{vTb}, v{vTa}")
    e("s_nop 1")
    e(f"v_permlane32_swap_b32 v{vTa}, v{vTb}")
    e(f"v_max_f32 v{vTa}, v{vTa}, v{vTb}")
    for k in range(8):
        e(f"v_sub_f32 v{vX+k}, v{x[k]}, v{vTa}")
    for k in range(8):
        e(f"v_mul_f32 v{vX+k}, s{sC}, v{vX+k}")
    for k in range(8):
        e(f"v_exp_f32 v{vX+k}, v{vX+k}")
    e(f"v_add_f32 v{vTa}, v{vX}, v{vX+1}")
    e(f"v_add_f32 v{vTb}, v{vX+2}, v{vX+3}")
    e(f"v_add_f32 v{vTa}, v{vTa}, v{vX+4}")
    e(f"v_add_f32 v{vTb}, v{vTb}, v{vX+5}")
    e(f"v_add_f32 v{vTa}, v{vTa}, v{vX+6}")
    e(f"v_add_f32 v{vTb}, v{vTb}, v{vX+7}")
    e(f"v_add_f32 v{vTa}, v{vTa}, v{vTb}")
    e(f"v_mov_b32 v{vTb}, v{vTa}")
    e("s_nop 1")
    e(f"v_permlane16_swap_b32 v{vTa}, v{vTb}")
    e(f"v_add_f32 v{vTa}, v{vTa}, v{vTb}")
    e(f"v_mov_b32 v{vTb}, v{vTa}")
    e("s_nop 1")
    e(f"v_permlane32_swap_b32 v{vTa}, v{vTb}")
    e(f"v_add_f32 v{vTa}, v{vTa}, v{vTb}")
    e(f"v_rcp_f32 v{vTa}, v{vTa}")
    e(f"s_add_u32 s{sN}, s{sN}, 4")
    for k in range(8):
        e(f"v_mul_f32 v{vX+k}, v{vX+k}, v{vTa}")
    e(f"v_cvt_pk_bf16_f32 v{vP}, v{vX}, v{vX+1}")
    e(f"v_cvt_pk_bf16_f32 v{vP+1}, v{vX+2}, v{vX+3}")
    e(f"v_cvt_pk_bf16_f32 v{vP+2}, v{vX+4}, v{vX+5}")
    e(f"v_cvt_pk_bf16_f32 v{vP+3}, v{vX+6}, v{vX+7}")
    for k in range(4):
        if k < 3:
            e(f"s_cmp_lg_u32 s{sM}, {k+1}")
            e(f"s_cbranch_scc1 L_sp{k+1}")
        for j in range(4):
            e(f"v_accvgpr_write_b32 a{24*k+j}, v{vP+j}")
        if k < 3:
            e("s_branch L_stepa")
            g.lab(f"L_sp{k+1}")
    stp(4)
    if nob: e("s_endpgm")
    e(f"v_add_u32 v{vQ0}, {4*TILE}, v{vQ0}")
    e(f"v_add_u32 v{vQ1}, {4*TILE}, v{vQ1}")
    e(f"s_add_u32 s{sNEED}, s{sN}, {35-16}")
    e(f"s_mov_b32 s{sM}, 0")
    for j in range(4):
        e(f"v_accvgpr_read_b32 v{vP+j}, a{j}")
    g.lab("L_stepb")
    e(f"v_and_b32 v{vP+4}, v{vP}, v{vM01}")
    e(f"v_and_b32 v{vP+5}, v{vP+1}, v{vM23}")
    e(f"v_xor_b32 v{vP}, v{vP}, v{vP+4}")
    e(f"v_xor_b32 v{vP+1}, v{vP+1}, v{vP+5}")
    def rdv(x, b):
        u, ee = b >> 1, b & 1
        r = vVom + 4*b + 2*x if x < 2 else vQ + 2*b
        e(f"ds_read_b64_tr_b16 v[{r}:{r+1}], v{vT0+(u&1)} offset:{x*TILE + (u>>1)*128 + 8*ee}")
    if orc:
        e("s_waitcnt lgkmcnt(0)")
        e(f"s_cmp_eq_u32 s{sM}, 3")
        e(f"s_cselect_b32 s{sPc}, 1, 0")
    poll("L_pm", f"s{sNEED}", not orc)
    e("s_waitcnt lgkmcnt(0)")
    if ff & 1:
        e(f"s_cmp_eq_u32 s{sM}, 3")
        e(f"s_cselect_b32 s{sT0}, s{sI}, 0")
        e(f"s_cmp_gt_u32 s{sT0}, {wb}")
        e("s_cbranch_scc0 L_noff1")
        e(f"s_call_b64 s[4:5], L_flush")
        g.lab("L_noff1")
    for b in range(6):
        rdv(0, b); rdv(1, b)
    for b in range(12):
        if b + 6 < 12:
            e("s_waitcnt lgkmcnt(10)")
        else:
            e(f"s_waitcnt lgkmcnt({2*(11-b)})")
        r = vVom + 4*b
        e(f"v_mfma_f32_16x16x32_bf16 v[{vO+4*b}:{vO+4*b+3}], v[{r}:{r+3}], v[{vP}:{vP+3}], 0")
        if b + 6 < 12:
            rdv(0, b+6); rdv(1, b+6)
    e(f"s_add_u32 s{sM}, s{sM}, 1")
    e(f"s_add_u32 s{sNEED}, s{sNEED}, 1")
    poll("L_pb", f"s{sNEED}", not orc)
    if ff & 2:
        e(f"s_cmp_eq_u32 s{sM}, 4")
        e(f"s_cselect_b32 s{sT0}, s{sI}, 0")
        e(f"s_cmp_gt_u32 s{sT0}, s{sPc}")
        e("s_cbranch_scc0 L_noff2")
        e(f"s_call_b64 s[4:5], L_flush")
        g.lab("L_noff2")
    for b in range(12):
        rdv(2, b)
    vPK = vK + 48
    def cvt(b):
        e(f"v_cvt_pk_bf16_f32 v{vPK+2*b}, v{vO+4*b}, v{vO+4*b+1}")
        e(f"v_cvt_pk_bf16_f32 v{vPK+2*b+1}, v{vO+4*b+2}, v{vO+4*b+3}")
    def owrite(u):
        e(f"ds_write_b128 v{vQ0+(u&1)}, v[{vPK+4*u}:{vPK+4*u+3}] offset:{(u>>1)*128}")
    LAG = 4
    for b in range(12):
        e(f"s_waitcnt lgkmcnt({11-b})")
        r = vQ + 2*b
        e(f"v_mfma_f32_16x16x16_bf16 v[{vO+4*b}:{vO+4*b+3}], v[{r}:{r+1}], v[{vP+4}:{vP+5}], v[{vO+4*b}:{vO+4*b+3}]")
        if b >= LAG: cvt(b - LAG)
    for u in range(4): owrite(u)
    cvt(8); cvt(9)
    owrite(4)
    cvt(10); cvt(11)
    owrite(5)
    e(f"v_add_u32 v{vT0}, {4*TILE}, v{vT0}")
    e(f"v_add_u32 v{vT1}, {4*TILE}, v{vT1}")
    e(f"s_add_u32 s{sNEED}, s{sNEED}, 3")
    def hold(k, j):
        return f"a[{24*k+4*j}:{24*k+4*j+3}]" if k < 3 else f"v[{vK+4*j}:{vK+4*j+3}]"
    def store(k, so):
        for j in range(6):
            off = f" offset:{(j%3)*1024}" if j % 3 else ""
            if not nostore: e(f"buffer_store_dwordx4 {hold(k,j)}, v{vG+j}, s[24:27], s{so} offen{off} {st}")
    for k in range(4):
        if k < 3:
            e(f"s_cmp_lg_u32 s{sM}, {k+1}")
            e(f"s_cbranch_scc1 L_rb{k+1}")
        for j in range(6):
            e(f"ds_read_b128 {hold(k,j)}, v{vL} offset:{j*1024}")
        if k < 3:
            for j in range(4):
                e(f"v_accvgpr_read_b32 v{vP+j}, a{24*(k+1)+j}")
            e("s_branch L_stepb")
            g.lab(f"L_rb{k+1}")
    stp(7)
    if orc:
        g.lab("L_ow")
        orc_check("w")
        e(f"s_cmp_eq_u32 s{sPc}, 1")
        e("s_cbranch_scc1 L_ow")
        e("s_waitcnt lgkmcnt(0)")
        store(3, sTOP)
        e("s_endpgm")
        g.lab("L_flush")
        for k in range(3):
            store(k, sTOP)
            e(f"s_sub_u32 s{sTOP}, s{sTOP}, {4*TILE}")
        e(f"s_mov_b32 s{sPc}, -1")
        e(f"s_setpc_b64 s[4:5]")
    elif ff:
        e(f"s_cmp_eq_u32 s{sPc}, -1")
        e("s_cbranch_scc1 L_last")
        poll("L_pw", wb, True)
        e(f"s_call_b64 s[4:5], L_flush")
        g.lab("L_last")
        e("s_waitcnt lgkmcnt(0)")
        store(3, sTOP)
        stp(3)
        e("s_branch L_fin" if stamp else "s_endpgm")
        g.lab("L_flush")
        for k in range(3):
            store(k, sTOP)
            e(f"s_sub_u32 s{sTOP}, s{sTOP}, {4*TILE}")
        e(f"s_mov_b32 s{sPc}, -1")
        e(f"s_setpc_b64 s[4:5]")
    else:
        if bar:
            e("s_barrier")
        elif wb:
            poll("L_pw", wb, True)
        for k in range(4):
            if k == 3: e("s_waitcnt lgkmcnt(0)")
            store(k, sTOP)
            if k < 3: e(f"s_sub_u32 s{sTOP}, s{sTOP}, {4*TILE}")
        stp(3)
    if stamp:
        g.lab("L_fin")
        e("s_waitcnt vmcnt(0)")
        e("s_memrealtime s[66:67]")
        e("s_waitcnt lgkmcnt(0)")
        e("v_mov_b32 v16, s64")
        e("v_mov_b32 v17, s66")
        e(f"s_mul_i32 s{sT0}, s2, 5")
        e(f"s_add_u32 s{sT0}, s{sT0}, s{sW}")
        e(f"s_lshl_b32 s{sT0}, s{sT0}, 3")
        e(f"v_mov_b32 v18, s{sT0}")
        e("v_cmp_eq_u32 vcc, 0, v0")
        e("s_and_saveexec_b64 s[62:63], vcc")
        e("global_store_dwordx2 v18, v[16:17], s[60:61]")
        for k in range(8):
            e(f"v_mov_b32 v{20+k}, s{72+2*k}")
        e("v_lshlrev_b32 v18, 2, v18")
        e("v_add_u32 v18, 65536, v18")
        e("global_store_dwordx4 v18, v[20:23], s[60:61]")
        e("global_store_dwordx4 v18, v[24:27], s[60:61] offset:16")
    g.lab("L_end")
    e("s_endpgm")
    acc = (NV + 3)//4*4
    ftr = f""".section .rodata,"a"
.p2align 6
.amdhsa_kernel {KNAME}
  .amdhsa_next_free_vgpr {acc+NA}
  .amdhsa_next_free_sgpr {90 if stamp else 60}
  .amdhsa_accum_offset {acc}
  .amdhsa_group_segment_fixed_size 0
  .amdhsa_kernarg_size 48
  .amdhsa_user_sgpr_count 2
  .amdhsa_user_sgpr_kernarg_segment_ptr 1
  .amdhsa_system_sgpr_workgroup_id_x 1
  .amdhsa_float_denorm_mode_32 3
.end_amdhsa_kernel
"""
    return "\n".join(top + g.L) + "\n" + ftr

if __name__ == "__main__":
    import argparse
    ap = argparse.ArgumentParser()
    ap.add_argument("out")
    ap.add_argument("--ld", default="nt")
    ap.add_argument("--ldo", default="")
    ap.add_argument("--ldok", default="")
    ap.add_argument("--st", default="sc1")
    ap.add_argument("--W", type=int, default=21)
    ap.add_argument("--stamp", action="store_true")
    ap.add_argument("--sleep", type=int, default=1)
    ap.add_argument("--nostore", action="store_true")
    ap.add_argument("--nob", action="store_true")
    ap.add_argument("--wb", type=int, default=51)
    ap.add_argument("--ex", type=int, default=0)
    ap.add_argument("--ff", type=int, default=0)
    ap.add_argument("--bar", action="store_true")
    ap.add_argument("--orc", type=int, default=0)
    a = ap.parse_args()
    open(a.out, "w").write(gen(ld=a.ld, ldo=a.ldo, ldok=a.ldok, st=a.st, W=a.W, stamp=a.stamp, sleep=a.sleep, nostore=a.nostore, wb=a.wb, nob=a.nob, ex=a.ex, ff=a.ff, bar=a.bar, orc=a.orc))
```

```python
import sys, struct, math

KNAME = "standalone__sliding_local_fixed_window__prompt_kernel"
NB = 25165824
TILE = 6144
QBASE = 18*TILE
FLAG = 26*TILE
LDS_BYTES = FLAG + 5*256

def f2u(x):
    return struct.unpack("<I", struct.pack("<f", x))[0]

SRD = {"Q": 12, "K": 16, "V": 20, "O": 24}
sW = 28; sHS = 29; sC = 30
sMASK = 32
sTOP = 40; sHB = 42; sP = 43; sPc = 44; sM = 45
sT0, sT1, sT2, sT3 = 46, 47, 48, 49
sCH = 50
sN = 52; sSL = 53; sNEED = 54; sI = 55

vG = 1
vL, vF = 7, 8
vM01, vM23 = 9, 10
vA0, vA1 = 11, 12
vQ0, vQ1 = 13, 14
vT0, vT1 = 15, 16
vTa, vTb = 17, 18
vDN = 19
vP = 20
vZ = 26
vO = 32
vS = vO
vX = vO + 12
vQ = 80
vK = 104
vVom = vK
NV = 176
NA = 76


DOC = """; ---------------------------------------------------------------------------------------------------------
;
; ---------------------------------------------------------------------------------------------------------"""

class Gen:
    def __init__(self):
        self.L = []
    def e(self, s): self.L.append("  " + s)
    def lab(self, s): self.L.append(s + ":")
    def c(self, s): self.L.append("  ; " + s)

def gen(ld="nt", st="sc1", W=24, stamp=False, sleep=1, nostore=False, wb=51, nob=False, ldo="", ldok=None, W0=0, nown=2, ex=0, ff=0, bar=False, rev=False, orc=0, pf=0, ffx=0, wbl=0, nnt=0):
    g = Gen(); e = g.e; c = g.c
    ldok = ld if ldok is None else ldok
    def stp(k):
        if stamp:
            e(f"s_memrealtime s[{72+2*k}:{73+2*k}]")
    hdr = open("standalone__sliding_local_fixed_window__prompt.s.ref").read().split("\n")
    top = []
    for l in hdr:
        if l.startswith("; @launch"):
            break
        top.append(l)
    top.append(f"; @launch grid=(256,1,1) block=(320,1,1) lds={LDS_BYTES}")
    top.append(DOC)
    top += ['.amdgcn_target "amdgcn-amd-amdhsa--gfx950"', ".text", f".globl {KNAME}", ".p2align 8", f".type {KNAME},@function", f"{KNAME}:"]

    if stamp:
        e("s_memrealtime s[64:65]")
        e("s_load_dwordx2 s[60:61], s[0:1], 40")
    e("s_load_dwordx2 s[16:17], s[0:1], 8")
    e("s_load_dwordx2 s[12:13], s[0:1], 0")
    e("s_load_dwordx2 s[20:21], s[0:1], 16")
    e("s_load_dwordx2 s[24:25], s[0:1], 24")
    z = vZ
    e(f"v_lshrrev_b32 v{z}, 6, v0")
    e(f"v_lshlrev_b32 v{vF}, 2, v0")
    e("s_cmp_ge_u32 s2, 256")
    e(f"v_readfirstlane_b32 s{sW}, v{z}")
    e("s_cbranch_scc1 L_end")
    e("v_and_b32 v0, 63, v0")
    e(f"v_lshrrev_b32 v{z+2}, 3, v0")
    e(f"v_lshlrev_b32 v{vL}, 4, v0")
    e(f"v_mul_u32_u24 v{z+2}, 11, v{z+2}")
    c("global offset of the 16 bytes lane L moves in piece j of a half tile: (L*16) ^ (row<<4), row = (8j + L/8) / 3")
    for j in range(3):
        if j: e(f"v_add_u32 v{z+2}, 88, v{z+2}")
        e(f"v_lshrrev_b32 v{z+3}, 1, v{z+2}")
        e(f"v_and_b32 v{z+3}, 0x70, v{z+3}")
        e(f"v_xor_b32 v{vG+j}, v{z+3}, v{vL}")
        e(f"v_add_u32 v{vG+3+j}, 3072, v{vG+j}")
    e(f"s_and_b32 s{sT0}, s2, 7")
    e(f"s_lshl_b32 s{sT0}, s{sT0}, 5")
    e(f"s_lshr_b32 s{sT1}, s2, 3")
    e(f"s_add_u32 s{sCH}, s{sT0}, s{sT1}")
    e(f"s_mul_i32 s{sTOP}, s{sCH}, {16*TILE}")
    e(f"s_add_u32 s{sTOP}, s{sTOP}, {15*TILE}")
    e(f"s_mov_b32 s18, {NB}")
    e(f"s_mov_b32 s19, 0x20000")
    e(f"s_cmp_lg_u32 s{sW}, 0")
    e("s_cbranch_scc1 L_consumer")

    c("loader wave")
    assert W % 3 == 0 and W <= 30
    sg = (W // 3) & 1
    lag = W // 6
    def grp(name, so, hf, pol):
        srd = SRD[name]
        if hf == 0: e(f"s_mov_b32 m0, s{sSL}")
        else: e(f"s_add_u32 m0, s{sSL}, 3072")
        e("s_nop 0")
        for j in range(3):
            off = f" offset:{j*1024}" if j else ""
            e(f"buffer_load_dwordx4 v{vG+hf*3+j}, s[{srd}:{srd+3}], s{so} offen{off} {pol} lds")
    def adv():
        e(f"s_sub_u32 s{sP}, s{sP}, {TILE}")
        e(f"s_add_u32 s{sSL}, s{sSL}, {TILE}")
    e(f"s_mov_b32 s{sP}, s{sTOP}")
    e(f"s_mov_b32 s{sSL}, 0")
    e("s_setprio 3")
    e("s_waitcnt lgkmcnt(0)")
    stp(0)
    if ldok != ld:
        g.lab("L_ldk0")
        for hf in range(2): grp("K", sP, hf, ldok)
        adv()
        e(f"s_cmp_lt_u32 s{sSL}, {2*TILE}")
        e("s_cbranch_scc1 L_ldk0")
    c("K: own tiles")
    g.lab("L_ldk")
    for hf in range(2):
        e(f"s_waitcnt vmcnt({W})")
        grp("K", sP, hf, ld)
    adv()
    e(f"s_cmp_lt_u32 s{sSL}, {16*TILE}")
    e("s_cbranch_scc1 L_ldk")
    e(f"s_lshr_b32 s{sHB}, s{sCH}, 3")
    e(f"s_mul_i32 s{sHB}, s{sHB}, 786432")
    def halo(name, lbl):
        g.lab(lbl)
        e(f"s_max_i32 s{sPc}, s{sP}, s{sHB}")
        for hf in range(2): grp(name, sPc, hf, ld)
        adv()
        e(f"s_cmp_lt_u32 s{sSL}, {18*TILE}")
        e(f"s_cbranch_scc1 {lbl}")
    c("K: halo tiles (clamped to the head's first tile where the head starts; masked later)")
    halo("K", "L_ldkh")
    for n in "QV":
        e(f"s_mov_b32 s{SRD[n]+2}, {NB}")
        e(f"s_mov_b32 s{SRD[n]+3}, 0x20000")
    e(f"v_mov_b32 v{z}, 0")
    e(f"v_add_u32 v{vF}, {FLAG}, v{vF}")
    e(f"s_mov_b32 s{sP}, s{sTOP}")
    e(f"ds_write_b32 v{vF}, v{z}")
    c("first Q tiles: the 12 halo loads (L2 hits) sit inside the window and are not counted against it")
    g.lab("L_ldq0")
    for hf in range(2):
        e(f"s_waitcnt vmcnt({W+12})")
        grp("Q", sP, hf, ld)
    adv()
    e(f"s_cmp_lt_u32 s{sSL}, {QBASE + (lag+sg)*TILE}")
    e("s_cbranch_scc1 L_ldq0")
    e("s_waitcnt lgkmcnt(0)")
    e("s_barrier")
    def phase(name, lbl, i1, pol, check):
        g.lab(lbl)
        if check:
            e(f"s_add_i32 s{sT0}, s{sI}, {lag-26}")
            e(f"s_and_b32 s{sT1}, s{sT0}, 3")
            e(f"s_lshl_b32 s{sT1}, s{sT1}, 8")
            e(f"v_add_u32 v{vDN}, s{sT1}, v{vF}")
            e(f"s_ashr_i32 s{sT0}, s{sT0}, 2")
            g.lab(lbl + "_p")
            e(f"ds_read_b32 v{z+1}, v{vDN} offset:256")
            e("s_waitcnt lgkmcnt(0)")
            e(f"v_readfirstlane_b32 s{sT1}, v{z+1}")
            e(f"s_cmp_gt_i32 s{sT1}, s{sT0}")
            e(f"s_cbranch_scc0 {lbl}_p")
        e(f"v_mov_b32 v{z}, s{sI}")
        e(f"s_waitcnt vmcnt({W})")
        if sg == 0: e(f"ds_write_b32 v{vF}, v{z}")
        grp(name, sP, 0, pol)
        e(f"s_waitcnt vmcnt({W})")
        if sg == 1: e(f"ds_write_b32 v{vF}, v{z}")
        grp(name, sP, 1, pol)
        adv()
        if name == "Q":
            e(f"s_cmp_eq_u32 s{sSL}, {FLAG}")
            e(f"s_cselect_b32 s{sSL}, {QBASE}, s{sSL}")
        e(f"s_add_u32 s{sI}, s{sI}, 1")
        e(f"s_cmp_lt_u32 s{sI}, {i1-lag}")
        e(f"s_cbranch_scc1 {lbl}")
    c("Q / V: a slot is refilled only after the compute wave that read it last has posted its done flag")
    e(f"s_mov_b32 s{sI}, {18+sg}")
    phase("Q", "L_ldq", 34, ld, True)
    e(f"s_mov_b32 s{sP}, s{sTOP}")
    e(f"s_mov_b32 s{sSL}, 0")
    if ldo != ld:
        phase("V", "L_ldv0", 34 + nown, ldo, True)
    phase("V", "L_ldv1", 42, ld, True)
    phase("V", "L_ldv2", 50 - ex, ld, False)
    halo("V", "L_ldvh")
    stp(1)
    for t in range(50 - ex - lag, 53):
        e(f"v_mov_b32 v{z+1+(t%4)}, {t}")
        e(f"s_waitcnt vmcnt({6*(52-t)})")
        e(f"ds_write_b32 v{vF}, v{z+1+(t%4)}")
    stp(2)
    e("s_waitcnt lgkmcnt(0)")
    e("s_branch L_fin" if stamp else "s_endpgm")

    g.lab("L_consumer")
    if pf:
        c("pull the whole kernel text into L2 (scalar loads, one per 128-byte line) while memory is still quiet")
        e("s_getpc_b64 s[4:5]")
        g.lab("L_pc")
        e(f"s_sub_u32 s4, s4, L_pc-{KNAME}")
        e("s_subb_u32 s5, s5, 0")
        for i in range(2, pf):
            e(f"s_load_dword s6, s[4:5], {128*i}")
    e(f"s_mov_b32 s26, {NB}")
    e(f"s_mov_b32 s27, 0x20000")
    e(f"v_mov_b32 v{vTa}, 0")
    e(f"v_add_u32 v{vF}, {FLAG}, v{vF}")
    e(f"s_sub_u32 s{sN}, s{sW}, 1")
    e(f"ds_write_b32 v{vF}, v{vTa}")
    e(f"s_and_b32 s{sHS}, s{sCH}, 7")
    e(f"s_mul_i32 s{sT2}, s{sN}, {TILE}")
    e(f"s_sub_u32 s{sTOP}, s{sTOP}, s{sT2}")
    e(f"v_and_b32 v{z}, 15, v0")
    e(f"v_lshrrev_b32 v{z+1}, 4, v0")
    e(f"v_and_b32 v{z+2}, 7, v0")
    e(f"v_xor_b32 v{z+2}, v{z+2}, v{z+1}")
    e(f"v_lshlrev_b32 v{z+2}, 4, v{z+2}")
    e(f"v_mul_u32_u24 v{z+3}, 384, v{z}")
    e(f"v_add3_u32 v{vA0}, v{z+2}, v{z+3}, s{sT2}")
    e(f"v_xor_b32 v{vA1}, 64, v{vA0}")
    e(f"v_add_u32 v{vQ0}, {QBASE}, v{vA0}")
    e(f"v_add_u32 v{vQ1}, {QBASE}, v{vA1}")
    e(f"v_lshrrev_b32 v{z+2}, 2, v0")
    e(f"v_and_b32 v{z+3}, 3, v0")
    e(f"v_and_b32 v{z+4}, 7, v{z+2}")
    e(f"v_xor_b32 v{z+3}, v{z+3}, v{z+4}")
    e(f"v_lshlrev_b32 v{z+3}, 4, v{z+3}")
    e(f"v_mul_u32_u24 v{z+2}, 384, v{z+2}")
    e(f"v_add3_u32 v{vT0}, v{z+2}, v{z+3}, s{sT2}")
    e(f"v_xor_b32 v{vT1}, 64, v{vT0}")
    e(f"s_add_u32 s{sT2}, s{sT2}, {QBASE + 4*TILE}")
    e(f"v_add_u32 v{vL}, s{sT2}, v{vL}")
    e(f"v_lshlrev_b32 v{z+1}, 2, v{z+1}")
    c("mask r: key 4g+r of the far tile (two tiles back) is inside the window iff 4g+r > query i")
    for r in range(4):
        e(f"v_add_u32 v{z+2}, {r}, v{z+1}")
        e(f"v_cmp_gt_u32 s[{sMASK+2*r}:{sMASK+2*r+1}], v{z+2}, v{z}")
    e(f"v_mov_b32 v{z+2}, 0xffff")
    e(f"v_mov_b32 v{z+3}, 0xffff0000")
    e(f"v_cndmask_b32 v{z+4}, 0, v{z+2}, s[{sMASK}:{sMASK+1}]")
    e(f"v_cndmask_b32 v{z+5}, 0, v{z+3}, s[{sMASK+2}:{sMASK+3}]")
    e(f"v_or_b32 v{vM01}, v{z+4}, v{z+5}")
    e(f"v_cndmask_b32 v{z+4}, 0, v{z+2}, s[{sMASK+4}:{sMASK+5}]")
    e(f"v_cndmask_b32 v{z+5}, 0, v{z+3}, s[{sMASK+6}:{sMASK+7}]")
    e(f"v_or_b32 v{vM23}, v{z+4}, v{z+5}")
    e(f"s_mov_b32 s{sC}, 0x{f2u(math.log2(math.e)/math.sqrt(192.0)):08x}")
    e(f"v_mov_b32 v{vDN}, {FLAG}")
    e(f"s_mov_b32 s{sM}, 0")
    e(f"s_mov_b32 s{sT3}, {4*TILE}")
    if ff and ffx:
        e(f"s_getreg_b32 s{sT0}, hwreg(HW_REG_XCC_ID)")
        e(f"s_and_b32 s{sT0}, s{sT0}, 7")
        e(f"s_bitcmp1_b32 {ffx}, s{sT0}")
        e(f"s_cselect_b32 s{sPc}, {wb}, 60")
    elif ff: e(f"s_mov_b32 s{sPc}, {wb}")
    e("s_waitcnt lgkmcnt(0)")
    if orc:
        e("s_memrealtime s[56:57]")
        e("s_waitcnt lgkmcnt(0)")
        e(f"s_mov_b32 s{sPc}, 0")
    e("s_barrier")
    def orc_check(tag):
        e(f"s_cmp_lg_u32 s{sPc}, 1")
        e(f"s_cbranch_scc1 L_oc{tag}")
        e("s_memrealtime s[58:59]")
        e("s_waitcnt lgkmcnt(0)")
        e("s_sub_u32 s58, s58, s56")
        e(f"s_cmp_lt_u32 s58, {orc}")
        e(f"s_cbranch_scc1 L_oc{tag}")
        e("s_call_b64 s[4:5], L_flush")
        g.lab(f"L_oc{tag}")
    def poll(name, need, cached=False):
        if cached:
            e(f"s_cmp_gt_u32 s{sI}, {need}")
            e(f"s_cbranch_scc1 {name}_ok")
        g.lab(name)
        if orc and name in ("L_pm", "L_pb"): orc_check(name)
        e(f"ds_read_b32 v{vTa}, v{vDN}")
        e("s_waitcnt lgkmcnt(0)")
        e(f"v_readfirstlane_b32 s{sI}, v{vTa}")
        e(f"s_cmp_gt_u32 s{sI}, {need}")
        if sleep:
            e(f"s_cbranch_scc1 {name}_ok")
            e(f"s_sleep {sleep}")
            e(f"s_branch {name}")
        else:
            e(f"s_cbranch_scc0 {name}")
        g.lab(name + "_ok")
    c("phase A")
    poll("L_pk", 17)
    g.lab("L_stepa")
    for x in range(3):
        for s in range(6):
            d = vK + 24*x + 4*s
            e(f"ds_read_b128 v[{d}:{d+3}], v{vA0+(s&1)} offset:{x*TILE + (s>>1)*128}")
    e(f"s_add_u32 s{sNEED}, s{sN}, 18")
    e(f"s_add_u32 s{sM}, s{sM}, 1")
    e(f"v_mov_b32 v{vTb}, s{sM}")
    poll("L_pq", f"s{sNEED}")
    for s in range(6):
        e(f"ds_read_b128 v[{vQ+4*s}:{vQ+4*s+3}], v{vQ0+(s&1)} offset:{(s>>1)*128}")
    e(f"ds_write_b32 v{vF}, v{vTb}")
    for s in range(6):
        e(f"s_waitcnt lgkmcnt({6-s})")
        for x in range(3):
            d = vS + 4*x
            kb = vK + 24*x
            cc = "0" if s == 0 else f"v[{d}:{d+3}]"
            e(f"v_mfma_f32_16x16x32_bf16 v[{d}:{d+3}], v[{kb+4*s}:{kb+4*s+3}], v[{vQ+4*s}:{vQ+4*s+3}], {cc}")
    e(f"v_add_u32 v{vA0}, {4*TILE}, v{vA0}")
    e(f"v_add_u32 v{vA1}, {4*TILE}, v{vA1}")
    e(f"v_add_u32 v{vQ0}, s{sT3}, v{vQ0}")
    e(f"v_add_u32 v{vQ1}, s{sT3}, v{vQ1}")
    e(f"s_sub_u32 s{sT3}, 0, s{sT3}")
    e(f"s_cmp_lg_u32 s{sHS}, 0")
    e(f"s_cselect_b32 s{sT0}, 0, s{sN}")
    e(f"s_cmp_lt_u32 s{sT0}, 14")
    e(f"s_cbranch_scc1 L_nohs")
    c("first two query tiles of a head: the key tiles before the head do not exist")
    for r in range(4):
        e(f"v_mov_b32 v{vS+8+r}, 0xff800000")
    e(f"s_cmp_lt_u32 s{sN}, 15")
    e(f"s_cbranch_scc1 L_nohs")
    for r in range(4):
        e(f"v_mov_b32 v{vS+4+r}, 0xff800000")
    g.lab("L_nohs")
    for r in range(4):
        e(f"v_cndmask_b32 v{vS+r}, v{vS+r}, v{vS+8+r}, s[{sMASK+2*r}:{sMASK+2*r+1}]")
    x = [vS+k for k in range(8)]
    e(f"v_max3_f32 v{vTa}, v{x[4]}, v{x[5]}, v{x[6]}")
    e(f"v_max3_f32 v{vTb}, v{x[0]}, v{x[1]}, v{x[7]}")
    e(f"v_max3_f32 v{vTa}, v{vTa}, v{x[2]}, v{x[3]}")
    e(f"v_max_f32 v{vTa}, v{vTa}, v{vTb}")
    e(f"v_mov_b32 v{vTb}, v{vTa}")
    e("s_nop 1")
    e(f"v_permlane16_swap_b32 v{vTa}, v{vTb}")
    e(f"v_max_f32 v{vTa}, v{vTa}, v{vTb}")
    e(f"v_mov_b32 v{vTb}, v{vTa}")
    e("s_nop 1")
    e(f"v_permlane32_swap_b32 v{vTa}, v{vTb}")
    e(f"v_max_f32 v{vTa}, v{vTa}, v{vTb}")
    for k in range(8):
        e(f"v_sub_f32 v{vX+k}, v{x[k]}, v{vTa}")
    for k in range(8):
        e(f"v_mul_f32 v{vX+k}, s{sC}, v{vX+k}")
    for k in range(8):
        e(f"v_exp_f32 v{vX+k}, v{vX+k}")
    e(f"v_add_f32 v{vTa}, v{vX}, v{vX+1}")
    e(f"v_add_f32 v{vTb}, v{vX+2}, v{vX+3}")
    e(f"v_add_f32 v{vTa}, v{vTa}, v{vX+4}")
    e(f"v_add_f32 v{vTb}, v{vTb}, v{vX+5}")
    e(f"v_add_f32 v{vTa}, v{vTa}, v{vX+6}")
    e(f"v_add_f32 v{vTb}, v{vTb}, v{vX+7}")
    e(f"v_add_f32 v{vTa}, v{vTa}, v{vTb}")
    e(f"v_mov_b32 v{vTb}, v{vTa}")
    e("s_nop 1")
    e(f"v_permlane16_swap_b32 v{vTa}, v{vTb}")
    e(f"v_add_f32 v{vTa}, v{vTa}, v{vTb}")
    e(f"v_mov_b32 v{vTb}, v{vTa}")
    e("s_nop 1")
    e(f"v_permlane32_swap_b32 v{vTa}, v{vTb}")
    e(f"v_add_f32 v{vTa}, v{vTa}, v{vTb}")
    e(f"v_rcp_f32 v{vTa}, v{vTa}")
    e(f"s_add_u32 s{sN}, s{sN}, 4")
    for k in range(8):
        e(f"v_mul_f32 v{vX+k}, v{vX+k}, v{vTa}")
    e(f"v_cvt_pk_bf16_f32 v{vP}, v{vX}, v{vX+1}")
    e(f"v_cvt_pk_bf16_f32 v{vP+1}, v{vX+2}, v{vX+3}")
    e(f"v_cvt_pk_bf16_f32 v{vP+2}, v{vX+4}, v{vX+5}")
    e(f"v_cvt_pk_bf16_f32 v{vP+3}, v{vX+6}, v{vX+7}")
    for k in range(4):
        if k < 3:
            e(f"s_cmp_lg_u32 s{sM}, {k+1}")
            e(f"s_cbranch_scc1 L_sp{k+1}")
        for j in range(4):
            e(f"v_accvgpr_write_b32 a{24*k+j}, v{vP+j}")
        if k < 3:
            e("s_branch L_stepa")
            g.lab(f"L_sp{k+1}")
    stp(4)
    if nob: e("s_endpgm")
    c("phase B")
    e(f"v_add_u32 v{vQ0}, {4*TILE}, v{vQ0}")
    e(f"v_add_u32 v{vQ1}, {4*TILE}, v{vQ1}")
    e(f"s_add_u32 s{sNEED}, s{sN}, {35-16}")
    e(f"s_mov_b32 s{sM}, 0")
    for j in range(4):
        e(f"v_accvgpr_read_b32 v{vP+j}, a{j}")
    g.lab("L_stepb")
    e(f"v_and_b32 v{vP+4}, v{vP}, v{vM01}")
    e(f"v_and_b32 v{vP+5}, v{vP+1}, v{vM23}")
    e(f"v_xor_b32 v{vP}, v{vP}, v{vP+4}")
    e(f"v_xor_b32 v{vP+1}, v{vP+1}, v{vP+5}")
    def rdv(x, b):
        u, ee = b >> 1, b & 1
        r = vVom + 4*b + 2*x if x < 2 else vQ + 2*b
        e(f"ds_read_b64_tr_b16 v[{r}:{r+1}], v{vT0+(u&1)} offset:{x*TILE + (u>>1)*128 + 8*ee}")
    if orc:
        e("s_waitcnt lgkmcnt(0)")
        e(f"s_cmp_eq_u32 s{sM}, 3")
        e(f"s_cselect_b32 s{sPc}, 1, 0")
    poll("L_pm", f"s{sNEED}", not orc)
    e("s_waitcnt lgkmcnt(0)")
    if ff & 1:
        e(f"s_cmp_eq_u32 s{sM}, 3")
        e(f"s_cselect_b32 s{sT0}, s{sI}, 0")
        e(f"s_cmp_gt_u32 s{sT0}, s{sPc}")
        e("s_cbranch_scc0 L_noff1")
        e(f"s_call_b64 s[4:5], L_flush")
        g.lab("L_noff1")
    for b in range(6):
        rdv(0, b); rdv(1, b)
    for b in range(12):
        if b + 6 < 12:
            e("s_waitcnt lgkmcnt(10)")
        else:
            e(f"s_waitcnt lgkmcnt({2*(11-b)})")
        r = vVom + 4*b
        e(f"v_mfma_f32_16x16x32_bf16 v[{vO+4*b}:{vO+4*b+3}], v[{r}:{r+3}], v[{vP}:{vP+3}], 0")
        if b + 6 < 12:
            rdv(0, b+6); rdv(1, b+6)
    e(f"s_add_u32 s{sM}, s{sM}, 1")
    e(f"s_add_u32 s{sNEED}, s{sNEED}, 1")
    poll("L_pb", f"s{sNEED}", not orc)
    if ff & 2:
        e(f"s_cmp_eq_u32 s{sM}, 4")
        e(f"s_cselect_b32 s{sT0}, s{sI}, 0")
        e(f"s_cmp_gt_u32 s{sT0}, s{sPc}")
        e("s_cbranch_scc0 L_noff2")
        e(f"s_call_b64 s[4:5], L_flush")
        g.lab("L_noff2")
    for b in range(12):
        rdv(2, b)
    vPK = vK + 48
    def cvt(b):
        e(f"v_cvt_pk_bf16_f32 v{vPK+2*b}, v{vO+4*b}, v{vO+4*b+1}")
        e(f"v_cvt_pk_bf16_f32 v{vPK+2*b+1}, v{vO+4*b+2}, v{vO+4*b+3}")
    def owrite(u):
        e(f"ds_write_b128 v{vQ0+(u&1)}, v[{vPK+4*u}:{vPK+4*u+3}] offset:{(u>>1)*128}")
    LAG = 4
    for b in range(12):
        e(f"s_waitcnt lgkmcnt({11-b})")
        r = vQ + 2*b
        e(f"v_mfma_f32_16x16x16_bf16 v[{vO+4*b}:{vO+4*b+3}], v[{r}:{r+1}], v[{vP+4}:{vP+5}], v[{vO+4*b}:{vO+4*b+3}]")
        if b >= LAG: cvt(b - LAG)
    for u in range(4): owrite(u)
    cvt(8); cvt(9)
    owrite(4)
    cvt(10); cvt(11)
    owrite(5)
    e(f"v_add_u32 v{vT0}, {4*TILE}, v{vT0}")
    e(f"v_add_u32 v{vT1}, {4*TILE}, v{vT1}")
    e(f"s_add_u32 s{sNEED}, s{sNEED}, 3")
    def hold(k, j):
        return f"a[{24*k+4*j}:{24*k+4*j+3}]" if k < 3 else f"v[{vK+4*j}:{vK+4*j+3}]"
    def store(k, so):
        for j in range(6):
            off = f" offset:{(j%3)*1024}" if j % 3 else ""
            pol = "nt" if 6*k+j < nnt else st
            if not nostore: e(f"buffer_store_dwordx4 {hold(k,j)}, v{vG+j}, s[24:27], s{so} offen{off} {pol}")
    for k in range(4):
        if k < 3:
            e(f"s_cmp_lg_u32 s{sM}, {k+1}")
            e(f"s_cbranch_scc1 L_rb{k+1}")
        for j in range(6):
            e(f"ds_read_b128 {hold(k,j)}, v{vL} offset:{j*1024}")
        if k < 3:
            for j in range(4):
                e(f"v_accvgpr_read_b32 v{vP+j}, a{24*(k+1)+j}")
            e("s_branch L_stepb")
            g.lab(f"L_rb{k+1}")
    stp(7)
    c("stores")
    if orc:
        g.lab("L_ow")
        orc_check("w")
        e(f"s_cmp_eq_u32 s{sPc}, 1")
        e("s_cbranch_scc1 L_ow")
        e("s_waitcnt lgkmcnt(0)")
        store(3, sTOP)
        e("s_endpgm")
        g.lab("L_flush")
        for k in range(3):
            store(k, sTOP)
            e(f"s_sub_u32 s{sTOP}, s{sTOP}, {4*TILE}")
        e(f"s_mov_b32 s{sPc}, -1")
        e(f"s_setpc_b64 s[4:5]")
    elif ff:
        e(f"s_cmp_eq_u32 s{sPc}, -1")
        e("s_cbranch_scc1 L_last")
        poll("L_pw", wb, True)
        e(f"s_call_b64 s[4:5], L_flush")
        g.lab("L_last")
        e("s_waitcnt lgkmcnt(0)")
        store(3, sTOP)
        stp(3)
        e("s_branch L_fin" if stamp else "s_endpgm")
        g.lab("L_flush")
        for k in range(3):
            store(k, sTOP)
            e(f"s_sub_u32 s{sTOP}, s{sTOP}, {4*TILE}")
        e(f"s_mov_b32 s{sPc}, -1")
        e(f"s_setpc_b64 s[4:5]")
    else:
        if bar:
            e("s_barrier")
        elif wb:
            poll("L_pw", wb, True)
        for k in range(4):
            if k == 3: e("s_waitcnt lgkmcnt(0)")
            store(k, sTOP)
            if k < 3: e(f"s_sub_u32 s{sTOP}, s{sTOP}, {4*TILE}")
        if wbl:
            e(f"s_cmp_lg_u32 s{sW}, 4")
            e("s_cbranch_scc1 L_end")
            if wbl >= 2:
                e(f"s_and_b32 s{sT0}, s{sCH}, {wbl-1}")
                e(f"s_cmp_lg_u32 s{sT0}, 0")
                e("s_cbranch_scc1 L_end")
            e("s_waitcnt vmcnt(0)")
            e("buffer_wbl2 sc1")
        stp(3)
    if stamp:
        g.lab("L_fin")
        e("s_waitcnt vmcnt(0)")
        e("s_memrealtime s[66:67]")
        e("s_waitcnt lgkmcnt(0)")
        e("v_mov_b32 v16, s64")
        e("v_mov_b32 v17, s66")
        e(f"s_mul_i32 s{sT0}, s2, 5")
        e(f"s_add_u32 s{sT0}, s{sT0}, s{sW}")
        e(f"s_lshl_b32 s{sT0}, s{sT0}, 3")
        e(f"v_mov_b32 v18, s{sT0}")
        e("v_cmp_eq_u32 vcc, 0, v0")
        e("s_and_saveexec_b64 s[62:63], vcc")
        e("global_store_dwordx2 v18, v[16:17], s[60:61]")
        for k in range(8):
            e(f"v_mov_b32 v{20+k}, s{72+2*k}")
        e("v_lshlrev_b32 v18, 2, v18")
        e("v_add_u32 v18, 65536, v18")
        e("global_store_dwordx4 v18, v[20:23], s[60:61]")
        e("global_store_dwordx4 v18, v[24:27], s[60:61] offset:16")
    g.lab("L_end")
    e("s_endpgm")
    acc = (NV + 3)//4*4
    ftr = f""".section .rodata,"a"
.p2align 6
.amdhsa_kernel {KNAME}
  .amdhsa_next_free_vgpr {acc+NA}
  .amdhsa_next_free_sgpr {90 if stamp else 60}
  .amdhsa_accum_offset {acc}
  .amdhsa_group_segment_fixed_size 0
  .amdhsa_kernarg_size 48
  .amdhsa_user_sgpr_count 2
  .amdhsa_user_sgpr_kernarg_segment_ptr 1
  .amdhsa_system_sgpr_workgroup_id_x 1
  .amdhsa_float_denorm_mode_32 3
.end_amdhsa_kernel
"""
    return "\n".join(top + g.L) + "\n" + ftr

if __name__ == "__main__":
    import argparse
    ap = argparse.ArgumentParser()
    ap.add_argument("out")
    ap.add_argument("--ld", default="nt")
    ap.add_argument("--ldo", default="")
    ap.add_argument("--ldok", default="")
    ap.add_argument("--st", default="sc1")
    ap.add_argument("--W", type=int, default=21)
    ap.add_argument("--stamp", action="store_true")
    ap.add_argument("--sleep", type=int, default=1)
    ap.add_argument("--nostore", action="store_true")
    ap.add_argument("--nob", action="store_true")
    ap.add_argument("--wb", type=int, default=51)
    ap.add_argument("--ex", type=int, default=0)
    ap.add_argument("--ff", type=int, default=0)
    ap.add_argument("--bar", action="store_true")
    ap.add_argument("--orc", type=int, default=0)
    ap.add_argument("--pf", type=int, default=0)
    ap.add_argument("--ffx", type=lambda x: int(x, 0), default=0)
    ap.add_argument("--wbl", type=int, default=0)
    ap.add_argument("--nnt", type=int, default=0)
    a = ap.parse_args()
    open(a.out, "w").write(gen(ld=a.ld, ldo=a.ldo, ldok=a.ldok, st=a.st, W=a.W, stamp=a.stamp, sleep=a.sleep, nostore=a.nostore, wb=a.wb, nob=a.nob, ex=a.ex, ff=a.ff, bar=a.bar, orc=a.orc, pf=a.pf, ffx=a.ffx, wbl=a.wbl, nnt=a.nnt))
```
